```python
import torch

def _softmax(x, axis=-1):
    return torch.softmax(x, dim=axis)
def _gelu(x):
    return torch.nn.functional.gelu(x, approximate="tanh")
def _silu(x):
    return torch.nn.functional.silu(x)
def _sigmoid(x):
    return torch.sigmoid(x)
def _layernorm(x, axis=-1, eps=1e-5):
    m = x.mean(dim=axis, keepdim=True)
    v = x.var(dim=axis, keepdim=True, unbiased=False)
    return (x - m) / torch.sqrt(v + eps)
def _scatter_add(tgt, idx, src, axis=0):
    return tgt.clone().index_add_(axis, idx, src)
def _segment_sum(src, seg, n):
    out = torch.zeros((n,) + src.shape[1:], dtype=src.dtype)
    return out.index_add_(0, seg, src)
def _pad(x, pw):
    flat = tuple(v for pair in reversed(pw) for v in pair)
    return torch.nn.functional.pad(x, flat)

kernel_name = 'interleave_layers__gqa_block_cached__mixer_token_mlp__decode'

def setup_inputs():

    _w = (lambda a: (lambda t: t.to(torch.bfloat16) if t.is_floating_point() else t)(torch.as_tensor(a)))
    def _A_setup():
        B, Sq, D = 2, 1, 576
        Hq, Hkv, Sk, Dh = 32, 16, 16384, 128
        assert Hq % Hkv == 0, (Hq, Hkv)
        return {
            "x": _w((lambda *s: torch.randn(*s, dtype=torch.bfloat16) * 0.1)(B, Sq, D)),
            "k_cache": _w((lambda *s: torch.randn(*s, dtype=torch.bfloat16) * 0.8)(B, Hkv, Sk, Dh)),
            "v_cache": _w((lambda *s: torch.randn(*s, dtype=torch.bfloat16) * 3.2)(B, Hkv, Sk, Dh)),
            "wq": _w((lambda *s: torch.randn(*s, dtype=torch.bfloat16) * 0.8)(D, Hq * Dh) * (D ** -0.5)),
            "wo": _w((lambda *s: torch.randn(*s, dtype=torch.bfloat16) * 3.2)(Hq * Dh, D) * ((Hq * Dh) ** -0.5)),
        }
    _A_in = _A_setup()

    def _B_setup():
        B, S, D, F = 2, 1, 576, 4608
        return {
            "x": _w((lambda *s: torch.randn(*s, dtype=torch.bfloat16) * 0.1)(B, S, D)),
            "w1": _w((lambda *s: torch.randn(*s, dtype=torch.bfloat16) * 0.8)(S, F) * (S ** -0.5)),
            "b1": _w((lambda *s: torch.randn(*s, dtype=torch.bfloat16) * 0.8)(F) * 0.02),
            "w2": _w((lambda *s: torch.randn(*s, dtype=torch.bfloat16) * 0.4)(F, S) * (F ** -0.5)),
            "b2": _w((lambda *s: torch.randn(*s, dtype=torch.bfloat16) * 0.4)(S) * 0.02),
        }
    _B_in = _B_setup()

    return {
        "A_x": _A_in["x"],
        "A_k_cache": _A_in["k_cache"],
        "A_v_cache": _A_in["v_cache"],
        "A_wq": _A_in["wq"],
        "A_wo": _A_in["wo"],
        "B_x": _B_in["x"],
        "B_w1": _B_in["w1"],
        "B_b1": _B_in["b1"],
        "B_w2": _B_in["w2"],
        "B_b2": _B_in["b2"],
    }

def reference(A_x, A_k_cache, A_v_cache, A_wq, A_wo, B_x, B_w1, B_b1, B_w2, B_b2):
    def _A_ref(x, k_cache, v_cache, wq, wo):
        B, Sq, D = x.shape
        Hq, Dh = 32, 128
        Hkv = k_cache.shape[1]
        rep = Hq // Hkv
        q = (lambda x, *d: x.permute(*d))((x @ wq).reshape(B, Sq, Hq, Dh), 0, 2, 1, 3)
        k = (lambda x, n, axis: torch.repeat_interleave(x, n, dim=axis))(k_cache, rep, axis=1)
        v = (lambda x, n, axis: torch.repeat_interleave(x, n, dim=axis))(v_cache, rep, axis=1)
        scores = torch.einsum("bhqd,bhkd->bhqk", q, k) * (Dh ** -0.5)
        p = _softmax(scores, axis=-1)
        o = torch.einsum("bhqk,bhkd->bhqd", p, v)
        return (lambda x, *d: x.permute(*d))(o, 0, 2, 1, 3).reshape(B, Sq, Hq * Dh) @ wo

    def _B_ref(x, w1, b1, w2, b2):
        B, S, D = x.shape
        h = _layernorm(x, axis=-1)
        u = torch.einsum("bsd,sf->bdf", h, w1) + b1
        u = _gelu(u)
        y = torch.einsum("bdf,fs->bds", u, w2) + b2
        return (lambda x, *d: x.permute(*d))(y, 0, 2, 1)

    x = A_x
    x = x + _A_ref(_layernorm(x, axis=-1), A_k_cache, A_v_cache, A_wq, A_wo)
    x = x + _B_ref(_layernorm(x, axis=-1), B_w1, B_b1, B_w2, B_b2)
    x = x + _A_ref(_layernorm(x, axis=-1), A_k_cache, A_v_cache, A_wq, A_wo)
    x = x + _B_ref(_layernorm(x, axis=-1), B_w1, B_b1, B_w2, B_b2)
    return x
```

```python
import sys, math, struct

NAME = "interleave_layers__gqa_block_cached__mixer_token_mlp__decode"
HEADER = open('cdna_kernels/%s.s.ref' % NAME).read().split('; Override launch')[0]

def f2u(x):
    return struct.unpack('<I', struct.pack('<f', x))[0]

class Gen:
    def __init__(self):
        self.L = []
        self.vm_issued = 0
        self.vm_done = -1
        self.nlabel = 0
        self.stubs = []
    def e(self, s):
        self.L.append("    " + s)
    def c(self, s):
        self.L.append("    ; " + s)
    def label(self, s):
        self.L.append(s + ":")
    def newlabel(self, p="L"):
        self.nlabel += 1
        return "%s_%d" % (p, self.nlabel)
    def vm(self, s):
        if self.vm_issued - (self.vm_done + 1) >= 62:
            self.wait_vm(self.vm_issued - 62)
        self.e(s)
        self.vm_issued += 1
        return self.vm_issued - 1
    def wait_vm(self, idx):
        if idx <= self.vm_done:
            return
        n = self.vm_issued - 1 - idx
        assert 0 <= n <= 63
        self.e("s_waitcnt vmcnt(%d)" % n)
        self.vm_done = idx
    def wait_vm_all(self):
        self.e("s_waitcnt vmcnt(0)")
        self.vm_done = self.vm_issued - 1
    def lgkm0(self):
        self.e("s_waitcnt lgkmcnt(0)")
    def nop(self, n):
        while n > 0:
            k = min(n, 16)
            self.e("s_nop %d" % (k - 1))
            n -= k
    def cond_begin(self):
        return (self.vm_issued, self.vm_done)
    def cond_end(self, st):
        self.vm_issued, self.vm_done = st

g = Gen()
e = g.e

Q0OFF  = 0
CLR0   = 0x8000
Q1OFF  = CLR0
MOFF   = Q1OFF + 2*8192
WOFF   = MOFF + 4*4096
YOFF   = WOFF + 4*36864
ROFF   = 0x40000
assert YOFF + 8*2304 <= ROFF
CLREND = CLR0 + 256*8192
assert ROFF + 4*262144 <= CLREND
WS_USED = CLREND + 0x100000
DBGOFF = CLREND

def QOFF(L, b): return (Q0OFF if L == 0 else Q1OFF) + b*8192

SCR = [0, 9728]
XS  = [19456, 19456+2304]
XN  = 24064
LDS_BYTES = 163840
scr_idx = [0]
def next_scr():
    s = SCR[scr_idx[0] & 1]; scr_idx[0] += 1
    return s

vLane, vKoff, vVoff = 1, 2, 3
vM = [4, 5, 6, 7]
vL4, vL16, vQoff = 8, 9, 10
vXNrd, vWO, vBp, vWORw, vCMBr = 11, 12, 13, 14, 15
vQ = [16, 32]
vO = [48, 56]; vMx = [52, 60]; vMc = [53, 61]; vLs = [54, 62]
vXNw = 55
vH8 = 63
vS = 64; vB = 68; vT = 72
vWQ = 80
T = 100
sK, sV, sWS, sWQ, sWOs = 4, 8, 12, 16, 20
sWave, sHkv, sSplit, sC, sSpin, sTmp = 24, 25, 26, 27, 28, 29
sRet = 30
pX, pK, pV, pWQ, pWO, pBX, pW1, pB1, pW2, pB2, pOut, pDbg, pWS = [32 + 2*i for i in range(13)]
sKV = 58
sTmp2 = 59
sMk = [60, 62, 64]
sSave = 66
sC1 = 68
sB2 = 70
sT3, sT4, sT5 = 71, 72, 73

def vr(b, n=1): return "v%d" % b if n == 1 else "v[%d:%d]" % (b, b+n-1)
def sr(b, n=1): return "s%d" % b if n == 1 else "s[%d:%d]" % (b, b+n-1)
DPPM = "row_mask:0xf bank_mask:0xf"

HALF = [('a', 16*i) for i in range(16)] + [('v', 192+16*i) for i in range(4)]
NSLOT = len(HALF)//2
def hreg(h, j):
    k, b = HALF[h]
    return "%s[%d:%d]" % (k, b+4*j, b+4*j+3)

LDPOL = "nt" if "--nont" not in sys.argv else ""

def srd(d, p, nbytes):
    e("s_mov_b32 s%d, s%d" % (d, p))
    e("s_and_b32 s%d, s%d, 0xffff" % (d+1, p+1))
    e("s_mov_b32 s%d, 0x%x" % (d+2, nbytes))
    e("s_mov_b32 s%d, 0x00020000" % (d+3))

def allreduce(op, v, t):
    for n in (8, 4, 2, 1):
        g.nop(2)
        e("%s_dpp %s, %s, %s row_ror:%d %s" % (op, vr(v), vr(v), vr(v), n, DPPM))
    crossrow(op, v, t)

def crossrow(op, v, t):
    e("v_mov_b32 %s, %s" % (vr(t), vr(v)))
    g.nop(2)
    e("v_permlane16_swap_b32 %s, %s" % (vr(v), vr(t)))
    e("%s %s, %s, %s" % (op, vr(v), vr(v), vr(t)))
    e("v_mov_b32 %s, %s" % (vr(t), vr(v)))
    g.nop(2)
    e("v_permlane32_swap_b32 %s, %s" % (vr(v), vr(t)))
    e("%s %s, %s, %s" % (op, vr(v), vr(v), vr(t)))

def round_bf16(regs, t):
    i = 0
    while i < len(regs):
        if i + 1 < len(regs):
            a, b = regs[i], regs[i+1]
            e("v_cvt_pk_bf16_f32 %s, %s, %s" % (vr(t), vr(a), vr(b)))
            e("v_lshlrev_b32 %s, 16, %s" % (vr(a), vr(t)))
            e("v_and_b32 %s, 0xffff0000, %s" % (vr(b), vr(t)))
            i += 2
        else:
            a = regs[i]
            e("v_cvt_pk_bf16_f32 %s, %s, %s" % (vr(t), vr(a), vr(a)))
            e("v_lshlrev_b32 %s, 16, %s" % (vr(a), vr(t)))
            i += 1

def poll_tail(lab_loop):
    done = g.newlabel("PD")
    e("s_cbranch_vccz %s" % done)
    e("s_cmp_eq_u32 s%d, 0" % sSpin)
    e("s_cbranch_scc1 %s" % done)
    e("s_sub_u32 s%d, s%d, 1" % (sSpin, sSpin))
    e("s_branch %s" % lab_loop)
    g.label(done)

def prologue():
    e("s_cmp_ge_u32 s2, 256")
    e("s_cbranch_scc1 L_end")
    e("s_load_dwordx16 s[32:47], s[0:1], 0")
    e("s_load_dwordx8 s[48:55], s[0:1], 64")
    e("s_load_dwordx2 s[56:57], s[0:1], 96")
    e("v_and_b32 v%d, 63, v0" % vLane)
    e("v_lshrrev_b32 v%d, 6, v0" % vT)
    e("s_and_b32 s%d, s2, 15" % sHkv)
    e("v_readfirstlane_b32 s%d, v%d" % (sWave, vT))
    e("s_lshr_b32 s%d, s2, 4" % sSplit)
    e("s_mov_b32 s%d, 0x%08x" % (sC, f2u(math.log2(math.e)/math.sqrt(128.0))))
    e("s_mov_b32 s%d, 0x20000" % sSpin)
    for i, m in enumerate((0x00F000F0, 0x0F000F00, 0xF000F000)):
        e("s_mov_b32 s%d, 0x%08x" % (sMk[i], m))
        e("s_mov_b32 s%d, 0x%08x" % (sMk[i]+1, m))
    gg, ii, ee = vT+1, vT+2, vT+3
    e("v_lshrrev_b32 v%d, 4, v%d" % (gg, vLane))
    e("v_and_b32 v%d, 15, v%d" % (ii, vLane))
    e("v_and_b32 v%d, 7, v%d" % (ee, vLane))
    e("v_bfe_u32 v%d, v%d, 3, 1" % (vH8, vLane))
    e("v_lshlrev_b32 v%d, 2, v%d" % (vL4, vLane))
    e("v_lshlrev_b32 v%d, 4, v%d" % (vL16, vLane))
    e("v_lshlrev_b32 v%d, 8, v%d" % (vKoff, ii))
    e("v_lshl_add_u32 v%d, v%d, 4, v%d" % (vKoff, gg, vKoff))
    e("v_lshlrev_b32 v%d, 10, v%d" % (vVoff, gg))
    e("v_lshl_add_u32 v%d, v%d, 4, v%d" % (vVoff, ii, vVoff))
    e("v_lshlrev_b32 v%d, 8, v%d" % (vQoff, vH8))
    e("v_lshl_add_u32 v%d, v%d, 4, v%d" % (vQoff, gg, vQoff))
    t0, t1 = vT+4, vT+5
    e("v_and_b32 v%d, 1, v%d" % (t0, vLane))
    e("v_lshlrev_b32 v%d, 4, v%d" % (t0, t0))
    e("v_mov_b32 v%d, 0xffff" % t1)
    e("v_lshlrev_b32 v%d, v%d, v%d" % (t1, t0, t1))
    e("v_lshrrev_b32 v%d, 1, v%d" % (t0, ee))
    for j in range(4):
        e("v_cmp_eq_u32 vcc, %d, v%d" % (j, t0))
        g.nop(2)
        e("v_cndmask_b32 v%d, 0, v%d, vcc" % (vM[j], t1))
    e("v_lshl_add_u32 v%d, v%d, 1, v%d" % (t0, gg, vH8))
    e("v_lshlrev_b32 v%d, 2, v%d" % (vBp, t0))
    e("v_mul_u32_u24 v%d, 1152, v%d" % (vWO, t0))
    e("v_lshl_add_u32 v%d, v%d, 4, v%d" % (vWO, ee, vWO))
    e("s_waitcnt lgkmcnt(0)")
    srd(sK, pK, 128 << 20)
    srd(sV, pV, 128 << 20)
    srd(sWS, pWS, WS_USED)
    srd(sWQ, pWQ, 576*4096*2)
    srd(sWOs, pWO, 4096*576*2)
    e("s_load_dword s%d, s[%d:%d], 0" % (sB2, pB2, pB2+1))
    e("s_lshl_b32 s%d, s%d, 22" % (sKV, sHkv))
    e("s_lshl_b32 s%d, s%d, 18" % (sTmp, sSplit))
    e("s_add_u32 s%d, s%d, s%d" % (sKV, sKV, sTmp))
    e("s_lshl_b32 s%d, s%d, 12" % (sTmp, sWave))
    e("s_add_u32 s%d, s%d, s%d" % (sKV, sKV, sTmp))
    e("s_mul_i32 s%d, s%d, 1280" % (sTmp, sWave))
    e("s_add_u32 s%d, s%d, %d" % (sTmp, sTmp, XN))
    e("v_and_b32 v%d, 3, v%d" % (t0, vLane))
    e("v_mul_u32_u24 v%d, 288, v%d" % (t0, t0))
    e("v_lshl_add_u32 v%d, v%d, 4, v%d" % (t0, gg, t0))
    e("v_add_u32 v%d, s%d, v%d" % (vXNrd, sTmp, t0))
    e("v_lshlrev_b32 v%d, 3, v%d" % (t0, vLane))
    e("v_add_u32 v%d, s%d, v%d" % (vXNw, sTmp, t0))
    e("v_lshrrev_b32 v%d, 5, v%d" % (t0, vLane))
    e("v_and_b32 v%d, 1, v%d" % (t1, gg))
    e("v_lshl_add_u32 v%d, v%d, 5, v%d" % (t1, t1, ee))
    e("v_lshl_add_u32 v%d, v%d, 6, v%d" % (t1, t0, t1))
    e("s_lshl_b32 s%d, s%d, 7" % (sTmp, sWave))
    e("v_add_u32 v%d, s%d, v%d" % (t1, sTmp, t1))
    e("v_lshlrev_b32 v%d, 2, v%d" % (t1, t1))
    e("v_add_u32 v%d, 2048, v%d" % (vWORw, vL4))
    e("v_cmp_eq_u32 vcc, v%d, v%d" % (t0, vH8))
    g.nop(2)
    e("v_cndmask_b32 v%d, v%d, v%d, vcc" % (vWORw, vWORw, t1))
    e("s_and_b32 s%d, s%d, 1" % (sTmp, sWave))
    e("s_lshl_b32 s%d, s%d, 9" % (sTmp, sTmp))
    e("s_lshr_b32 s%d, s%d, 1" % (sTmp2, sWave))
    e("s_lshl_b32 s%d, s%d, 7" % (sTmp2, sTmp2))
    e("s_add_u32 s%d, s%d, s%d" % (sTmp, sTmp, sTmp2))
    e("v_lshlrev_b32 v%d, 8, v%d" % (t0, t0))
    e("v_lshl_add_u32 v%d, v%d, 4, v%d" % (t0, ee, t0))
    e("v_bfe_u32 v%d, v%d, 3, 2" % (t1, vLane))
    e("v_lshl_add_u32 v%d, v%d, 2, v%d" % (t0, t1, t0))
    e("v_add_u32 v%d, s%d, v%d" % (vCMBr, sTmp, t0))

def load_wq():
    t0, t1, t2 = vT, vT+1, vT+2
    e("v_bfe_u32 v%d, v%d, 2, 2" % (t0, vLane))
    e("v_mul_u32_u24 v%d, 144, v%d" % (t0, t0))
    e("v_lshrrev_b32 v%d, 4, v%d" % (t1, vLane))
    e("v_lshl_add_u32 v%d, v%d, 3, v%d" % (t0, t1, t0))
    e("v_lshlrev_b32 v%d, 13, v%d" % (t0, t0))
    e("v_and_b32 v%d, 3, v%d" % (t2, vLane))
    e("v_lshl_add_u32 v%d, v%d, 1, v%d" % (t0, t2, t0))
    e("s_lshl_b32 s%d, s%d, 9" % (sTmp, sHkv))
    e("s_lshl_b32 s%d, s%d, 5" % (sTmp2, sSplit))
    e("s_add_u32 s%d, s%d, s%d" % (sTmp, sTmp, sTmp2))
    e("s_lshl_b32 s%d, s%d, 3" % (sTmp2, sWave))
    e("s_add_u32 s%d, s%d, s%d" % (sTmp, sTmp, sTmp2))
    e("v_add_u32 v%d, s%d, v%d" % (t0, sTmp, t0))
    e("v_mov_b32 v%d, 0x7ffffff0" % t2)
    e("v_cmp_gt_u32 vcc, 2, v%d" % t1)
    g.nop(2)
    e("v_cndmask_b32 v%d, v%d, v%d, vcc" % (t2, t2, t0))
    last = None
    for t in range(5):
        for ee in range(8):
            e("s_mov_b32 s%d, 0x%x" % (sTmp, (32*t+ee)*8192))
            last = g.vm("buffer_load_ushort v%d, v%d, s[%d:%d], s%d offen" % (192+8*t+ee, t2 if t == 4 else t0, sWQ, sWQ+3, sTmp))
    return last

def pack_wq(idx):
    g.wait_vm(idx)
    for k in range(20):
        e("v_lshl_or_b32 v%d, v%d, 16, v%d" % (vWQ+k, 192+2*k+1, 192+2*k))

def clear_ws():
    t = vT+4
    for i in range(4):
        e("v_mov_b32 v%d, -1" % (t+i))
    e("s_lshl_b32 s%d, s2, 13" % sTmp)
    e("s_lshl_b32 s%d, s%d, 11" % (sTmp2, sWave))
    e("s_add_u32 s%d, s%d, s%d" % (sTmp, sTmp, sTmp2))
    e("s_add_u32 s%d, s%d, 0x%x" % (sTmp, sTmp, CLR0))
    g.vm("buffer_store_dwordx4 v[%d:%d], v%d, s[%d:%d], s%d offen sc1" % (t, t+3, vL16, sWS, sWS+3, sTmp))
    g.vm("buffer_store_dwordx4 v[%d:%d], v%d, s[%d:%d], s%d offen offset:1024 sc1" % (t, t+3, vL16, sWS, sWS+3, sTmp))
    g.nop(2)

def load_x0(b, X):
    t = vT
    e("v_lshlrev_b32 v%d, 3, v%d" % (t, vLane))
    e("v_lshlrev_b32 v%d, 1, v%d" % (t+1, vLane))
    g.vm("global_load_dwordx2 v[%d:%d], v%d, s[%d:%d] offset:%d" % (X+10, X+11, t, pX, pX+1, b*1152))
    g.vm("global_load_dwordx2 v[%d:%d], v%d, s[%d:%d] offset:%d" % (X+12, X+13, t, pX, pX+1, b*1152+512))
    return g.vm("global_load_ushort v%d, v%d, s[%d:%d] offset:%d" % (X+14, t+1, pX, pX+1, b*1152+1024))

def unpack_x0(X):
    for k in range(4):
        e("v_lshlrev_b32 v%d, 16, v%d" % (X+2*k, X+10+k))
        e("v_and_b32 v%d, 0xffff0000, v%d" % (X+2*k+1, X+10+k))
    e("v_lshlrev_b32 v%d, 16, v%d" % (X+8, X+14))

def store_xs(b, X):
    e("ds_write_b128 v%d, v[%d:%d] offset:%d" % (vL16, X, X+3, XS[b]))
    e("ds_write_b128 v%d, v[%d:%d] offset:%d" % (vL16, X+4, X+7, XS[b]+1024))
    e("ds_write_b32 v%d, v%d offset:%d" % (vL4, X+8, XS[b]+2048))

def ln_stats(X, D, mean, var, t):
    e("v_add_f32 v%d, v%d, v%d" % (mean, X, X+1))
    for i in range(2, 9):
        e("v_add_f32 v%d, v%d, v%d" % (mean, mean, X+i))
    allreduce("v_add_f32", mean, t)
    e("v_mul_f32 v%d, 0x%08x, v%d" % (mean, f2u(1.0/576), mean))
    for i in range(9):
        e("v_sub_f32 v%d, v%d, v%d" % (D+i, X+i, mean))
    e("v_mul_f32 v%d, v%d, v%d" % (var, D, D))
    for i in range(1, 9):
        e("v_fmac_f32 v%d, v%d, v%d" % (var, D+i, D+i))
    allreduce("v_add_f32", var, t)
    e("v_mul_f32 v%d, 0x%08x, v%d" % (var, f2u(1.0/576), var))

def q_stage(L, b, X, wq_ready):
    g.c("q_stage L=%d b=%d" % (L, b))
    D = X+10; mean = X+20; var = X+21; t = X+22; A = X+24
    ln_stats(X, D, mean, var, t)
    e("v_add_f32 v%d, 0x%08x, v%d" % (var, f2u(1e-5), var))
    e("v_rsq_f32 v%d, v%d" % (var, var))
    g.nop(1)
    for i in range(9):
        e("v_mul_f32 v%d, v%d, v%d" % (D+i, D+i, var))
    for k in range(4):
        e("v_cvt_pk_bf16_f32 v%d, v%d, v%d" % (A+k, D+2*k, D+2*k+1))
    e("v_cvt_pk_bf16_f32 v%d, v%d, v%d" % (A+4, D+8, D+8))
    e("v_mov_b32 v%d, 0" % (A+5))
    e("v_lshlrev_b32 v%d, 1, v%d" % (t, vLane))
    e("v_lshl_add_u32 v%d, v%d, 1, v%d" % (t+1, t, t))
    e("v_sub_u32 v%d, v%d, v%d" % (t, vXNw, t+1))
    e("v_lshlrev_b32 v%d, 3, v%d" % (t+1, vLane))
    e("v_sub_u32 v%d, v%d, v%d" % (t+1, vXNw, t+1))
    e("v_and_b32 v%d, 28, v%d" % (A+6, vL4))
    e("v_add_u32 v%d, v%d, v%d" % (t+1, t+1, A+6))
    e("ds_write_b64 v%d, v[%d:%d]" % (vXNw, A, A+1))
    e("ds_write_b64 v%d, v[%d:%d] offset:512" % (vXNw, A+2, A+3))
    e("ds_write_b16 v%d, v%d offset:1024" % (t, A+4))
    e("ds_write_b32 v%d, v%d offset:1152" % (t+1, A+5))
    g.lgkm0()
    for tt in range(5):
        e("ds_read_b128 v[%d:%d], v%d offset:%d" % (A+4*tt, A+4*tt+3, vXNrd, 64*tt))
    if wq_ready is not None:
        g.wait_vm(wq_ready)
    g.lgkm0()
    R = X+20
    for tt in range(5):
        e("v_mfma_f32_16x16x32_bf16 v[%d:%d], v[%d:%d], v[%d:%d], %s" % (R, R+3, A+4*tt, A+4*tt+3, vWQ+4*tt, vWQ+4*tt+3, "0" if tt == 0 else "v[%d:%d]" % (R, R+3)))
    g.nop(8)
    for k in range(3):
        e("v_cndmask_b32 v%d, v%d, v%d, s[%d:%d]" % (R, R, R+1+k, sMk[k], sMk[k]+1))
    for n in (4, 8):
        g.nop(2)
        e("v_add_f32_dpp v%d, v%d, v%d row_ror:%d %s" % (R, R, R, n, DPPM))
    g.nop(2)
    e("v_mov_b32_dpp v%d, v%d quad_perm:[1,1,3,3] %s" % (R+1, R, DPPM))
    e("v_cvt_pk_bf16_f32 v%d, v%d, v%d" % (R, R, R+1))
    e("v_min_u32 v%d, -2, v%d" % (R, R))
    e("s_lshl_b32 s%d, s%d, 9" % (sTmp, sHkv))
    e("s_lshl_b32 s%d, s%d, 5" % (sTmp2, sSplit))
    e("s_add_u32 s%d, s%d, s%d" % (sTmp, sTmp, sTmp2))
    e("s_lshl_b32 s%d, s%d, 3" % (sTmp2, sWave))
    e("s_add_u32 s%d, s%d, s%d" % (sTmp, sTmp, sTmp2))
    e("s_add_u32 s%d, s%d, 0x%x" % (sTmp, sTmp, QOFF(L, b)))
    e("v_lshlrev_b32 v%d, 1, v%d" % (R+1, vLane))
    e("s_mov_b64 exec, 5")
    idx = g.vm("buffer_store_dword v%d, v%d, s[%d:%d], s%d offen sc1" % (R, R+1, sWS, sWS+3, sTmp))
    e("s_mov_b64 exec, -1")
    return idx

def q_gather(L, b, check=True):
    g.c("q_gather L=%d b=%d" % (L, b))
    lab = g.newlabel("PQ")
    e("s_lshl_b32 s%d, s%d, 9" % (sTmp, sHkv))
    e("s_add_u32 s%d, s%d, 0x%x" % (sTmp, sTmp, QOFF(L, b)))
    g.label(lab)
    Q = vQ[b]
    for j in range(4):
        g.vm("buffer_load_dwordx4 v[%d:%d], v%d, s[%d:%d], s%d offen offset:%d sc1" % (Q+4*j, Q+4*j+3, vQoff, sWS, sWS+3, sTmp, 64*j))
    g.wait_vm_all()
    if check:
        t = vT
        e("v_max3_u32 v%d, v%d, v%d, v%d" % (t, Q, Q+1, Q+2))
        for k in range(3, 15, 2):
            e("v_max3_u32 v%d, v%d, v%d, v%d" % (t, t, Q+k, Q+k+1))
        e("v_max_u32 v%d, v%d, v%d" % (t, t, Q+15))
        e("v_cmp_eq_u32 vcc, -1, v%d" % t)
        poll_tail(lab)

def counter_wait(all16):
    lab = g.newlabel("PC")
    t = vT
    if all16:
        e("v_and_b32 v%d, 60, v%d" % (t+1, vL4))
    else:
        e("s_lshl_b32 s%d, s%d, 2" % (sTmp, sHkv))
        e("v_mov_b32 v%d, s%d" % (t+1, sTmp))
    g.label(lab)
    g.vm("global_load_dword v%d, v%d, s[%d:%d] sc1" % (t, t+1, pDbg, pDbg+1))
    g.wait_vm_all()
    e("v_cmp_ne_u32 vcc, 16, v%d" % t)
    poll_tail(lab)

def acc_init(b):
    for r in range(4):
        e("v_mov_b32 v%d, 0" % (vO[b]+r))
    e("v_mov_b32 v%d, 0xff800000" % vMx[b])
    e("v_mov_b32 v%d, 0xff800000" % vMc[b])
    e("v_mov_b32 v%d, 0" % vLs[b])

def unit_load(b, u, slot):
    off = b*(64 << 20) + u*16384
    e("s_add_u32 s%d, s%d, 0x%x" % (sTmp, sKV, off))
    for j in range(4):
        ik = g.vm("buffer_load_dwordx4 %s, v%d, s[%d:%d], s%d offen offset:%d %s" % (hreg(2*slot, j), vKoff, sK, sK+3, sTmp, 64*j, LDPOL))
    for j in range(4):
        iv = g.vm("buffer_load_dwordx4 %s, v%d, s[%d:%d], s%d offen offset:%d %s" % (hreg(2*slot+1, j), vVoff, sV, sV+3, sTmp, 256*j, LDPOL))
    return (ik, iv)

def unit_compute(b, slot, ids):
    Q = vQ[b]; S = vS; B = vB; t = vT
    if ids: g.wait_vm(ids[0])
    for j in range(4):
        e("v_mfma_f32_16x16x32_bf16 v[%d:%d], %s, v[%d:%d], %s" % (S, S+3, hreg(2*slot, j), Q+4*j, Q+4*j+3, "0" if j == 0 else "v[%d:%d]" % (S, S+3)))
    g.nop(8)
    e("v_max3_f32 v%d, v%d, v%d, v%d" % (t, S, S+1, S+2))
    e("v_max_f32 v%d, v%d, v%d" % (t, t, S+3))
    e("v_cmp_gt_f32 vcc, v%d, v%d" % (t, vMx[b]))
    stub = g.newlabel("RS"); cont = g.newlabel("RC")
    e("s_cbranch_vccnz %s" % stub)
    g.label(cont)
    g.stubs.append((stub, cont, b))
    for r in range(4):
        e("v_fma_f32 v%d, v%d, s%d, -v%d" % (S+r, S+r, sC, vMc[b]))
    for r in range(4):
        e("v_exp_f32 v%d, v%d" % (S+r, S+r))
    if ids: g.wait_vm(ids[1])
    for r in range(4):
        e("v_cvt_pk_bf16_f32 v%d, v%d, v%d" % (t+1, S+r, S+r))
        for j in range(4):
            e("v_and_b32 v%d, v%d, v%d" % (B+j, t+1, vM[j]))
        e("v_add_f32 v%d, v%d, v%d" % (vLs[b], vLs[b], S+r))
        g.nop(1)
        e("v_mfma_f32_16x16x32_bf16 v[%d:%d], %s, v[%d:%d], v[%d:%d]" % (vO[b], vO[b]+3, hreg(2*slot+1, r), B, B+3, vO[b], vO[b]+3))

def rescale_subs():
    for b in range(2):
        g.label("RESCALE%d" % b)
        t = vT
        e("v_max_f32 v%d, v%d, v%d" % (t, t, vMx[b]))
        crossrow("v_max_f32", t, t+1)
        e("v_mov_b32 v%d, v%d" % (vMx[b], t))
        e("v_mul_f32 v%d, s%d, v%d" % (t, sC, t))
        e("v_sub_f32 v%d, v%d, v%d" % (t+1, vMc[b], t))
        e("v_exp_f32 v%d, v%d" % (t+1, t+1))
        e("v_mov_b32 v%d, v%d" % (vMc[b], t))
        e("v_mul_f32 v%d, v%d, v%d" % (vLs[b], vLs[b], t+1))
        for r in range(4):
            e("v_mul_f32 v%d, v%d, v%d" % (vO[b]+r, vO[b]+r, t+1))
        e("s_setpc_b64 s[%d:%d]" % (sRet, sRet+1))
    for stub, cont, b in g.stubs:
        g.label(stub)
        e("s_call_b64 s[%d:%d], RESCALE%d" % (sRet, sRet+1, b))
        e("s_branch %s" % cont)

def combine_publish(L, b):
    g.c("combine_publish L=%d b=%d" % (L, b))
    sc = next_scr()
    t = vT
    g.nop(8)
    crossrow("v_add_f32", vLs[b], t)
    e("s_lshl_b32 s%d, s%d, 10" % (sTmp, sWave))
    e("v_add_u32 v%d, s%d, v%d" % (t, sTmp, vL16))
    e("ds_write_b128 v%d, v[%d:%d] offset:%d" % (t, vO[b], vO[b]+3, sc))
    e("s_lshl_b32 s%d, s%d, 3" % (sTmp, sWave))
    e("v_lshlrev_b32 v%d, 5, v%d" % (t+1, vH8))
    e("v_add_u32 v%d, s%d, v%d" % (t+1, sTmp, t+1))
    e("v_mov_b32 v%d, v%d" % (t+2, vMc[b]))
    e("v_mov_b32 v%d, v%d" % (t+3, vLs[b]))
    e("ds_write_b64 v%d, v[%d:%d] offset:%d" % (t+1, t+2, t+3, sc+4096))
    g.lgkm0()
    e("s_barrier")
    X = T
    for i in range(4):
        e("ds_read_b32 v%d, v%d offset:%d" % (X+i, vCMBr, sc+1024*i))
    e("s_lshr_b32 s%d, s%d, 1" % (sTmp, sWave))
    e("s_lshl_b32 s%d, s%d, 5" % (sTmp, sTmp))
    e("v_mov_b32 v%d, s%d" % (t, sTmp))
    e("ds_read_b128 v[%d:%d], v%d offset:%d" % (X+4, X+7, t, sc+4096))
    e("ds_read_b128 v[%d:%d], v%d offset:%d" % (X+8, X+11, t, sc+4096+16))
    g.lgkm0()
    M = X+12; Lr = X+13
    e("v_max3_f32 v%d, v%d, v%d, v%d" % (M, X+4, X+6, X+8))
    e("v_max_f32 v%d, v%d, v%d" % (M, M, X+10))
    for i in range(4):
        e("v_sub_f32 v%d, v%d, v%d" % (X+4+2*i, X+4+2*i, M))
    for i in range(4):
        e("v_exp_f32 v%d, v%d" % (X+4+2*i, X+4+2*i))
    g.nop(1)
    e("v_mul_f32 v%d, v%d, v%d" % (X+14, X, X+4))
    e("v_mul_f32 v%d, v%d, v%d" % (Lr, X+5, X+4))
    for i in range(1, 4):
        e("v_fmac_f32 v%d, v%d, v%d" % (X+14, X+i, X+4+2*i))
        e("v_fmac_f32 v%d, v%d, v%d" % (Lr, X+5+2*i, X+4+2*i))
    Lb = L*2+b
    e("s_lshl_b32 s%d, s%d, 14" % (sTmp, sHkv))
    e("s_lshl_b32 s%d, s%d, 10" % (sTmp2, sSplit))
    e("s_add_u32 s%d, s%d, s%d" % (sTmp, sTmp, sTmp2))
    e("s_lshl_b32 s%d, s%d, 8" % (sTmp2, sWave))
    e("s_add_u32 s%d, s%d, s%d" % (sTmp, sTmp, sTmp2))
    e("s_add_u32 s%d, s%d, 0x%x" % (sTmp, sTmp, ROFF + Lb*262144))
    g.vm("buffer_store_dword v%d, v%d, s[%d:%d], s%d offen sc1" % (X+14, vL4, sWS, sWS+3, sTmp))
    e("s_lshl_b32 s%d, s%d, 8" % (sTmp, sHkv))
    e("s_lshr_b32 s%d, s%d, 1" % (sTmp2, sWave))
    e("s_lshl_b32 s%d, s%d, 7" % (sTmp2, sTmp2))
    e("s_add_u32 s%d, s%d, s%d" % (sTmp, sTmp, sTmp2))
    e("s_lshl_b32 s%d, s%d, 3" % (sTmp2, sSplit))
    e("s_add_u32 s%d, s%d, s%d" % (sTmp, sTmp, sTmp2))
    e("s_add_u32 s%d, s%d, 0x%x" % (sTmp, sTmp, MOFF + Lb*4096))
    e("s_mov_b64 exec, 1")
    g.vm("buffer_store_dwordx2 v[%d:%d], v%d, s[%d:%d], s%d offen sc1" % (M, M+1, vL4, sWS, sWS+3, sTmp))
    e("s_mov_b64 exec, -1")

WOA = T+56
def load_wo():
    e("s_lshl_b32 s%d, s%d, 8" % (sTmp, sHkv))
    e("s_lshl_b32 s%d, s%d, 6" % (sTmp2, sWave))
    e("s_add_u32 s%d, s%d, s%d" % (sTmp, sTmp, sTmp2))
    e("s_mul_i32 s%d, s%d, 1152" % (sTmp, sTmp))
    e("s_min_u32 s%d, s%d, 8" % (sTmp2, sSplit))
    e("s_lshl_b32 s%d, s%d, 7" % (sTmp2, sTmp2))
    e("s_add_u32 s%d, s%d, s%d" % (sTmp, sTmp, sTmp2))
    for t in range(8):
        idx = g.vm("buffer_load_dwordx4 v[%d:%d], v%d, s[%d:%d], s%d offen" % (WOA+4*t, WOA+4*t+3, vWO, sWOs, sWOs+3, sTmp))
        if t < 7: e("s_add_u32 s%d, s%d, 9216" % (sTmp, sTmp))
    return idx

def wo_stage(L, b):
    g.c("wo_stage L=%d b=%d" % (L, b))
    sc = next_scr()
    Lb = L*2+b
    skip = g.newlabel("WS")
    st = g.cond_begin()
    e("s_cmp_ge_u32 s%d, 9" % sSplit)
    e("s_cbranch_scc1 %s" % skip)
    X = T; ML = T+16; o = T+18; t = T+19; t2 = T+20; BP = T+24; Bq = T+32; D = T+36
    e("s_lshl_b32 s%d, s%d, 14" % (sT3, sHkv))
    e("s_lshl_b32 s%d, s%d, 8" % (sTmp2, sWave))
    e("s_add_u32 s%d, s%d, s%d" % (sT3, sT3, sTmp2))
    e("s_add_u32 s%d, s%d, 0x%x" % (sT3, sT3, ROFF + Lb*262144))
    e("s_lshl_b32 s%d, s%d, 8" % (sT4, sHkv))
    e("s_lshr_b32 s%d, s%d, 1" % (sTmp2, sWave))
    e("s_lshl_b32 s%d, s%d, 7" % (sTmp2, sTmp2))
    e("s_add_u32 s%d, s%d, s%d" % (sT4, sT4, sTmp2))
    e("s_add_u32 s%d, s%d, 0x%x" % (sT4, sT4, MOFF + Lb*4096))
    e("v_and_b32 v%d, 15, v%d" % (t2+1, vLane))
    e("v_lshlrev_b32 v%d, 3, v%d" % (t2+1, t2+1))
    lab = g.newlabel("PW")
    g.label(lab)
    g.vm("buffer_load_dwordx2 v[%d:%d], v%d, s[%d:%d], s%d offen sc1" % (ML, ML+1, t2+1, sWS, sWS+3, sT4))
    e("s_mov_b32 s%d, s%d" % (sTmp, sT3))
    for s in range(16):
        g.vm("buffer_load_dword v%d, v%d, s[%d:%d], s%d offen offset:%d sc1" % (X+s, vL4, sWS, sWS+3, sTmp, (s & 3)*1024))
        if (s & 3) == 3 and s < 15: e("s_add_u32 s%d, s%d, 4096" % (sTmp, sTmp))
    g.wait_vm_all()
    e("v_mov_b32 v%d, v%d" % (t, ML))
    for n in (8, 4, 2, 1):
        g.nop(2)
        e("v_max_f32_dpp v%d, v%d, v%d row_ror:%d %s" % (t, t, t, n, DPPM))
    e("v_sub_f32 v%d, v%d, v%d" % (t, ML, t))
    e("v_exp_f32 v%d, v%d" % (t, t))
    g.nop(1)
    e("v_mul_f32 v%d, v%d, v%d" % (t2, t, ML+1))
    for n in (8, 4, 2, 1):
        g.nop(2)
        e("v_add_f32_dpp v%d, v%d, v%d row_ror:%d %s" % (t2, t2, t2, n, DPPM))
    e("v_rcp_f32 v%d, v%d" % (t2, t2))
    e("v_mov_b32 v%d, 0" % o)
    e("v_mul_f32 v%d, v%d, v%d" % (t, t, t2))
    g.nop(2)
    for s in range(16):
        e("v_fmac_f32_dpp v%d, v%d, v%d row_newbcast:%d %s" % (o, t, X+s, s, DPPM))
    e("v_cmp_u_f32 vcc, v%d, v%d" % (o, o))
    poll_tail(lab)
    e("v_cvt_pk_bf16_f32 v%d, v%d, v%d" % (o, o, o))
    for tt in range(8):
        e("ds_bpermute_b32 v%d, v%d, v%d offset:%d" % (BP+tt, vBp, o, 32*tt))
    g.lgkm0()
    for tt in range(8):
        for j in range(4):
            e("v_and_b32 v%d, v%d, v%d" % (Bq+j, BP+tt, vM[j]))
        g.nop(2)
        e("v_mfma_f32_16x16x32_bf16 v[%d:%d], v[%d:%d], v[%d:%d], %s" % (D, D+3, WOA+4*tt, WOA+4*tt+3, Bq, Bq+3, "0" if tt == 0 else "v[%d:%d]" % (D, D+3)))
    g.nop(8)
    for r in range(4):
        e("ds_write_b32 v%d, v%d offset:%d" % (vWORw, D+r, sc+32*r))
    g.lgkm0()
    g.label(skip)
    g.cond_end(st)
    e("s_barrier")
    skip2 = g.newlabel("WS")
    st = g.cond_begin()
    e("s_cmp_ge_u32 s%d, 9" % sSplit)
    e("s_cbranch_scc1 %s" % skip2)
    e("s_cmp_lg_u32 s%d, 0" % sWave)
    e("s_cbranch_scc1 %s" % skip2)
    for i in range(8):
        e("ds_read_b32 v%d, v%d offset:%d" % (X+i, vL4, sc+256*i))
    e("s_mul_i32 s%d, s%d, 2304" % (sTmp, sHkv))
    e("s_lshl_b32 s%d, s%d, 8" % (sTmp2, sSplit))
    e("s_add_u32 s%d, s%d, s%d" % (sTmp, sTmp, sTmp2))
    e("s_add_u32 s%d, s%d, 0x%x" % (sTmp, sTmp, WOFF + Lb*36864))
    g.lgkm0()
    for i in range(4):
        e("v_add_f32 v%d, v%d, v%d" % (X+i, X+i, X+4+i))
    e("v_add_f32 v%d, v%d, v%d" % (X, X, X+1))
    e("v_add_f32 v%d, v%d, v%d" % (X+2, X+2, X+3))
    e("v_add_f32 v%d, v%d, v%d" % (X, X, X+2))
    g.vm("buffer_store_dword v%d, v%d, s[%d:%d], s%d offen sc1" % (X, vL4, sWS, sWS+3, sTmp))
    g.label(skip2)
    g.cond_end(st)

def gather4(X, sbase):
    lab = g.newlabel("PG")
    g.label(lab)
    e("s_mov_b32 s%d, s%d" % (sTmp, sbase))
    for p in range(4):
        R = X+12*p
        g.vm("buffer_load_dwordx4 v[%d:%d], v%d, s[%d:%d], s%d offen sc1" % (R, R+3, vL16, sWS, sWS+3, sTmp))
        g.vm("buffer_load_dwordx4 v[%d:%d], v%d, s[%d:%d], s%d offen offset:1024 sc1" % (R+4, R+7, vL16, sWS, sWS+3, sTmp))
        g.vm("buffer_load_dword v%d, v%d, s[%d:%d], s%d offen offset:2048 sc1" % (R+8, vL4, sWS, sWS+3, sTmp))
        if p < 3: e("s_add_u32 s%d, s%d, 2304" % (sTmp, sTmp))
    g.wait_vm_all()
    for i in range(9):
        e("v_add_f32 v%d, v%d, v%d" % (X+i, X+i, X+12+i))
        e("v_add_f32 v%d, v%d, v%d" % (X+24+i, X+24+i, X+36+i))
    for i in range(9):
        e("v_add_f32 v%d, v%d, v%d" % (X+i, X+i, X+24+i))
    t = X+12
    e("v_add_f32 v%d, v%d, v%d" % (t, X, X+1))
    for i in range(2, 9):
        e("v_add_f32 v%d, v%d, v%d" % (t, t, X+i))
    e("v_cmp_u_f32 vcc, v%d, v%d" % (t, t))
    poll_tail(lab)

MW = T+56
def load_mlpw():
    t = vT
    e("v_mul_u32_u24 v%d, 12, v%d" % (t, vLane))
    e("s_mul_i32 s%d, s%d, 2304" % (sTmp, sWave))
    e("v_add_u32 v%d, s%d, v%d" % (t, sTmp, t))
    for a, p in enumerate((pW1, pB1, pW2)):
        for k in range(3):
            idx = g.vm("global_load_dwordx3 v[%d:%d], v%d, s[%d:%d] offset:%d" % (MW+12*a+4*k, MW+12*a+4*k+2, t, p, p+1, 768*k))
    return idx
def mwreg(a, k): return MW + 12*a + 4*(k//3) + (k % 3)

def x_stage(L, b):
    g.c("x_stage L=%d b=%d" % (L, b))
    sc = next_scr()
    Lb = L*2+b
    X = T
    e("s_mul_i32 s%d, s%d, %d" % (sT3, sWave, 4*2304))
    e("s_add_u32 s%d, s%d, 0x%x" % (sT3, sT3, WOFF + Lb*36864))
    gather4(X, sT3)
    t = X+12
    e("s_mul_i32 s%d, s%d, 2304" % (sTmp, sWave))
    e("v_add_u32 v%d, s%d, v%d" % (t, sTmp, vL16))
    e("v_add_u32 v%d, s%d, v%d" % (t+1, sTmp, vL4))
    e("ds_write_b128 v%d, v[%d:%d] offset:%d" % (t, X, X+3, sc))
    e("ds_write_b128 v%d, v[%d:%d] offset:%d" % (t, X+4, X+7, sc+1024))
    e("ds_write_b32 v%d, v%d offset:%d" % (t+1, X+8, sc+2048))
    g.lgkm0()
    e("s_barrier")
    for p in range(4):
        R = X+12*p
        e("ds_read_b128 v[%d:%d], v%d offset:%d" % (R, R+3, vL16, sc+2304*p))
        e("ds_read_b128 v[%d:%d], v%d offset:%d" % (R+4, R+7, vL16, sc+2304*p+1024))
        e("ds_read_b32 v%d, v%d offset:%d" % (R+8, vL4, sc+2304*p+2048))
    g.lgkm0()
    for i in range(9):
        e("v_add_f32 v%d, v%d, v%d" % (X+i, X+i, X+12+i))
        e("v_add_f32 v%d, v%d, v%d" % (X+24+i, X+24+i, X+36+i))
    R = X+12
    e("ds_read_b128 v[%d:%d], v%d offset:%d" % (R, R+3, vL16, XS[b]))
    e("ds_read_b128 v[%d:%d], v%d offset:%d" % (R+4, R+7, vL16, XS[b]+1024))
    e("ds_read_b32 v%d, v%d offset:%d" % (R+8, vL4, XS[b]+2048))
    for i in range(9):
        e("v_add_f32 v%d, v%d, v%d" % (X+i, X+i, X+24+i))
    round_bf16([X+i for i in range(9)], X+36)
    g.lgkm0()
    for i in range(9):
        e("v_add_f32 v%d, v%d, v%d" % (X+i, X+i, R+i))
    round_bf16([X+i for i in range(9)], X+36)
    e("s_barrier")
    store_xs(b, X)

def mlp_stage(L, b, mw_ready):
    g.c("mlp_stage L=%d b=%d" % (L, b))
    X = T; D = T+10; mean = T+20; var = T+21; t = T+22
    ln_stats(X, D, mean, var, t)
    e("v_add_f32 v%d, 0x%08x, v%d" % (t, f2u(1e-5), var))
    e("v_rsq_f32 v%d, v%d" % (t, t))
    g.nop(1)
    e("v_mul_f32 v%d, v%d, v%d" % (var, var, t))
    e("v_mul_f32 v%d, v%d, v%d" % (var, var, t))
    e("v_add_f32 v%d, 0x%08x, v%d" % (var, f2u(1e-5), var))
    e("v_rsq_f32 v%d, v%d" % (var, var))
    g.nop(1)
    e("v_mul_f32 v%d, v%d, v%d" % (var, var, t))
    H = [T+24, T+26, T+28]
    e("s_min_u32 s%d, s2, 191" % sTmp)
    e("s_mul_i32 s%d, s%d, 12" % (sTmp, sTmp))
    e("v_mov_b32 v%d, s%d" % (t, sTmp))
    for k in range(3):
        e("ds_read_b32 v%d, v%d offset:%d" % (H[k]+1, t, XS[b]+4*k))
    g.lgkm0()
    for k in range(3):
        e("v_sub_f32 v%d, v%d, v%d" % (H[k], H[k]+1, mean))
        e("v_mul_f32 v%d, v%d, v%d" % (H[k], H[k], var))
    for k in range(3):
        round_bf16([H[k]], t)
    c0 = -2.0*math.sqrt(2.0/math.pi)*math.log2(math.e)
    c1 = c0*0.044715
    C0 = T+30
    e("v_mov_b32 v%d, 0x%08x" % (C0, f2u(c0)))
    e("s_mov_b32 s%d, 0x%08x" % (sC1, f2u(c1)))
    e("s_mov_b32 s%d, 0x%08x" % (sC1+1, f2u(c1)))
    ACC = [T+32, T+34, T+36]
    for k in range(3):
        e("v_mov_b32 v%d, 0" % ACC[k]); e("v_mov_b32 v%d, 0" % (ACC[k]+1))
    W = [T+10, T+12, T+14]
    U = [T+38, T+40, T+42]; A = [T+44, T+46, T+48]; G_ = [T+50, T+52, T+54]
    if mw_ready is not None: g.wait_vm(mw_ready)
    def p(r): return "v[%d:%d]" % (r, r+1)
    for k in range(9):
        for a in range(3):
            e("v_lshlrev_b32 v%d, 16, v%d" % (W[a], mwreg(a, k)))
            e("v_and_b32 v%d, 0xffff0000, v%d" % (W[a]+1, mwreg(a, k)))
        for el in range(3):
            e("v_pk_fma_f32 %s, %s, %s, %s op_sel_hi:[0,1,1]" % (p(U[el]), p(H[el]), p(W[0]), p(W[1])))
        for el in range(3):
            e("v_pk_mul_f32 %s, %s, %s" % (p(A[el]), p(U[el]), p(U[el])))
        for el in range(3):
            e("v_pk_fma_f32 %s, %s, s[%d:%d], %s op_sel_hi:[1,1,0]" % (p(A[el]), p(A[el]), sC1, sC1+1, p(C0)))
        for el in range(3):
            e("v_pk_mul_f32 %s, %s, %s" % (p(A[el]), p(A[el]), p(U[el])))
        for el in range(3):
            e("v_exp_f32 v%d, v%d" % (A[el], A[el]))
            e("v_exp_f32 v%d, v%d" % (A[el]+1, A[el]+1))
        for el in range(3):
            e("v_pk_mul_f32 %s, %s, %s" % (p(G_[el]), p(U[el]), p(W[2])))
        for el in range(3):
            e("v_pk_add_f32 %s, %s, 1.0 op_sel_hi:[1,0]" % (p(A[el]), p(A[el])))
        for el in range(3):
            e("v_rcp_f32 v%d, v%d" % (A[el], A[el]))
            e("v_rcp_f32 v%d, v%d" % (A[el]+1, A[el]+1))
        g.nop(1)
        for el in range(3):
            e("v_pk_fma_f32 %s, %s, %s, %s" % (p(ACC[el]), p(G_[el]), p(A[el]), p(ACC[el])))
    for el in range(3):
        e("v_add_f32 v%d, v%d, v%d" % (ACC[el], ACC[el], ACC[el]+1))
    for el in range(3):
        allreduce("v_add_f32", ACC[el], t)
    e("v_cmp_eq_u32 vcc, 1, v%d" % vLane)
    g.nop(2)
    e("v_cndmask_b32 v%d, v%d, v%d, vcc" % (ACC[0], ACC[0], ACC[1]))
    e("v_cmp_eq_u32 vcc, 2, v%d" % vLane)
    g.nop(2)
    e("v_cndmask_b32 v%d, v%d, v%d, vcc" % (ACC[0], ACC[0], ACC[2]))
    return ACC[0], H

def mlp_publish(b, R):
    skip = g.newlabel("MS")
    st = g.cond_begin()
    e("s_cmp_ge_u32 s2, 192")
    e("s_cbranch_scc1 %s" % skip)
    e("s_mul_i32 s%d, s%d, 2304" % (sTmp, sWave))
    e("s_mul_i32 s%d, s2, 12" % sTmp2)
    e("s_add_u32 s%d, s%d, s%d" % (sTmp, sTmp, sTmp2))
    e("s_add_u32 s%d, s%d, 0x%x" % (sTmp, sTmp, YOFF + b*4*2304))
    e("s_mov_b64 exec, 7")
    g.vm("buffer_store_dword v%d, v%d, s[%d:%d], s%d offen sc1" % (R, vL4, sWS, sWS+3, sTmp))
    e("s_mov_b64 exec, -1")
    g.label(skip)
    g.cond_end(st)

def y_stage(b):
    g.c("y_stage b=%d" % b)
    X = T
    e("s_mov_b32 s%d, 0x%x" % (sT3, YOFF + b*4*2304))
    gather4(X, sT3)
    R = X+12
    e("ds_read_b128 v[%d:%d], v%d offset:%d" % (R, R+3, vL16, XS[b]))
    e("ds_read_b128 v[%d:%d], v%d offset:%d" % (R+4, R+7, vL16, XS[b]+1024))
    e("ds_read_b32 v%d, v%d offset:%d" % (R+8, vL4, XS[b]+2048))
    round_bf16([X+i for i in range(9)], X+36)
    for i in range(9):
        e("v_add_f32 v%d, s%d, v%d" % (X+i, sB2, X+i))
    round_bf16([X+i for i in range(9)], X+36)
    g.lgkm0()
    for i in range(9):
        e("v_add_f32 v%d, v%d, v%d" % (X+i, X+i, R+i))
    round_bf16([X+i for i in range(9)], X+36)
    e("s_barrier")
    store_xs(b, X)

def final_out(b, R):
    g.c("final_out b=%d" % b)
    sc = next_scr()
    t = T+10
    e("s_lshl_b32 s%d, s%d, 8" % (sTmp, sWave))
    e("v_add_u32 v%d, s%d, v%d" % (t, sTmp, vL4))
    e("ds_write_b32 v%d, v%d offset:%d" % (t, R, sc))
    g.lgkm0()
    e("s_barrier")
    skip = g.newlabel("FS")
    st = g.cond_begin()
    e("s_cmp_ge_u32 s2, 192")
    e("s_cbranch_scc1 %s" % skip)
    e("s_cmp_lg_u32 s%d, 0" % sWave)
    e("s_cbranch_scc1 %s" % skip)
    for i in range(4):
        e("ds_read_b32 v%d, v%d offset:%d" % (t+1+i, vL4, sc+256*i))
    e("s_mul_i32 s%d, s2, 12" % sTmp)
    e("v_and_b32 v%d, 12, v%d" % (t, vL4))
    e("v_add_u32 v%d, s%d, v%d" % (t, sTmp, t))
    e("ds_read_b32 v%d, v%d offset:%d" % (t+5, t, XS[b]))
    g.lgkm0()
    e("v_add_f32 v%d, v%d, v%d" % (t+1, t+1, t+2))
    e("v_add_f32 v%d, v%d, v%d" % (t+3, t+3, t+4))
    e("v_add_f32 v%d, v%d, v%d" % (t+1, t+1, t+3))
    round_bf16([t+1], t+6)
    e("v_add_f32 v%d, s%d, v%d" % (t+1, sB2, t+1))
    round_bf16([t+1], t+6)
    e("v_add_f32 v%d, v%d, v%d" % (t+1, t+1, t+5))
    e("v_cvt_pk_bf16_f32 v%d, v%d, v%d" % (t+1, t+1, t+1))
    e("v_lshrrev_b32 v%d, 1, v%d" % (t, t))
    e("s_mov_b64 exec, 7")
    g.vm("global_store_short v%d, v%d, s[%d:%d] offset:%d" % (t, t+1, pOut, pOut+1, b*1152))
    e("s_mov_b64 exec, -1")
    g.label(skip)
    g.cond_end(st)

def main():
    prologue()
    X0, X1 = T, T+46
    ix0 = load_x0(0, X0)
    ix1 = load_x0(1, X1)
    iwq = load_wq()
    clear_ws()
    NU = 32
    def unit_of(n):
        n %= NU
        return (n & 1, n >> 1)
    ids = {}
    D = 2
    for n in range(D):
        ids[n] = unit_load(*unit_of(n), n % NSLOT)
    g.wait_vm(ix1)
    g.lgkm0()
    e("s_lshl_b32 s%d, s%d, 16" % (sB2, sB2))
    unpack_x0(X0); unpack_x0(X1)
    store_xs(0, X0); store_xs(1, X1)
    pack_wq(iwq)
    q_stage(0, 0, X0, None)
    iq = q_stage(0, 1, X1, None)
    D2 = 6
    for n in range(D, D2):
        ids[n] = unit_load(*unit_of(n), n % NSLOT)
    g.wait_vm(iq)
    e("s_barrier")
    skip = g.newlabel("SG")
    st = g.cond_begin()
    e("s_cmp_lg_u32 s%d, 0" % sWave)
    e("s_cbranch_scc1 %s" % skip)
    e("s_lshl_b32 s%d, s%d, 2" % (sTmp, sHkv))
    e("v_mov_b32 v%d, s%d" % (vT, sTmp))
    e("v_mov_b32 v%d, 1" % (vT+1))
    e("s_mov_b64 exec, 1")
    g.vm("global_atomic_add v%d, v%d, s[%d:%d]" % (vT, vT+1, pDbg, pDbg+1))
    e("s_mov_b64 exec, -1")
    g.label(skip)
    g.cond_end(st)
    counter_wait(False)
    q_gather(0, 0, check=False)
    q_gather(0, 1, check=False)
    acc_init(0); acc_init(1)
    nxt = D2
    for n in range(NU):
        while nxt < NU and nxt < n + D2 + 1 and nxt - NSLOT < n:
            ids[nxt] = unit_load(*unit_of(nxt), nxt % NSLOT); nxt += 1
        unit_compute(unit_of(n)[0], n % NSLOT, ids[n])
    counter_wait(True)
    iwo = load_wo()
    combine_publish(0, 0); combine_publish(0, 1)
    g.wait_vm(iwo)
    wo_stage(0, 0); wo_stage(0, 1)
    imw = load_mlpw()
    for b in range(2):
        x_stage(0, b)
        R, H = mlp_stage(0, b, imw)
        mlp_publish(b, R)
    for b in range(2):
        y_stage(b)
        q_stage(1, b, T, None)
    q_gather(1, 0); q_gather(1, 1)
    acc_init(0); acc_init(1)
    first = NU - NSLOT
    nxt = NU
    for n in range(first, first + NU):
        unit_compute(unit_of(n)[0], n % NSLOT, ids.get(n) if n >= NU else None)
        while nxt < first + NU and nxt - NSLOT <= n and nxt < max(n, NU) + 7:
            ids[nxt] = unit_load(*unit_of(nxt), nxt % NSLOT); nxt += 1
    iwo = load_wo()
    combine_publish(1, 0); combine_publish(1, 1)
    g.wait_vm(iwo)
    wo_stage(1, 0); wo_stage(1, 1)
    imw = load_mlpw()
    for b in range(2):
        x_stage(1, b)
        R, H = mlp_stage(1, b, imw)
        final_out(b, R)
    g.label("L_end")
    e("s_endpgm")
    rescale_subs()

main()
out = HEADER + "; @launch grid=(256,1,1) block=(256,1,1) lds=%d\n" % LDS_BYTES
out += '''.amdgcn_target "amdgcn-amd-amdhsa--gfx950"
.text
.globl %s_kernel
.p2align 8
.type %s_kernel,@function
%s_kernel:
''' % (NAME, NAME, NAME)
out += "\n".join(g.L) + "\n"
out += '''.section .rodata,"a"
.p2align 6
.amdhsa_kernel %s_kernel
  .amdhsa_next_free_vgpr 512
  .amdhsa_next_free_sgpr 96
  .amdhsa_accum_offset 256
  .amdhsa_group_segment_fixed_size 0
  .amdhsa_kernarg_size 104
  .amdhsa_user_sgpr_count 2
  .amdhsa_user_sgpr_kernarg_segment_ptr 1
  .amdhsa_system_sgpr_workgroup_id_x 1
.end_amdhsa_kernel
''' % NAME
path = [a for a in sys.argv[1:] if not a.startswith("--")]
open(path[0] if path else 'cdna_kernels/%s.s' % NAME, 'w').write(out)
print("lines:", len(g.L))
```

```python
import sys, math, struct

NAME = "interleave_layers__gqa_block_cached__mixer_token_mlp__decode"
HEADER = open('cdna_kernels/%s.s.ref' % NAME).read().split('; Override launch')[0]

def f2u(x):
    return struct.unpack('<I', struct.pack('<f', x))[0]

class Gen:
    def __init__(self):
        self.L = []
        self.vm_issued = 0
        self.vm_done = -1
        self.nlabel = 0
        self.stubs = []
    def e(self, s):
        self.L.append("    " + s)
    def c(self, s):
        self.L.append("    ; " + s)
    def label(self, s):
        self.L.append(s + ":")
    def newlabel(self, p="L"):
        self.nlabel += 1
        return "%s_%d" % (p, self.nlabel)
    def vm(self, s):
        if self.vm_issued - (self.vm_done + 1) >= 62:
            self.wait_vm(self.vm_issued - 62)
        self.e(s)
        self.vm_issued += 1
        return self.vm_issued - 1
    def wait_vm(self, idx):
        if idx <= self.vm_done:
            return
        n = self.vm_issued - 1 - idx
        assert 0 <= n <= 63
        self.e("s_waitcnt vmcnt(%d)" % n)
        self.vm_done = idx
    def wait_vm_all(self):
        self.e("s_waitcnt vmcnt(0)")
        self.vm_done = self.vm_issued - 1
    def lgkm0(self):
        self.e("s_waitcnt lgkmcnt(0)")
    def nop(self, n):
        while n > 0:
            k = min(n, 16)
            self.e("s_nop %d" % (k - 1))
            n -= k
    def cond_begin(self):
        return (self.vm_issued, self.vm_done)
    def cond_end(self, st):
        self.vm_issued, self.vm_done = st

g = Gen()
e = g.e

Q0OFF  = 0
CLR0   = 0x8000
Q1OFF  = CLR0
MOFF   = Q1OFF + 2*8192
WOFF   = MOFF + 4*4096
YOFF   = WOFF + 4*36864
ROFF   = 0x40000
assert YOFF + 8*2304 <= ROFF
CLREND = CLR0 + 256*8192
assert ROFF + 4*262144 <= CLREND
WS_USED = CLREND + 0x100000
DBGOFF = CLREND

def QOFF(L, b): return (Q0OFF if L == 0 else Q1OFF) + b*8192

SCR = [0, 9728]
XS  = [19456, 19456+2304]
XN  = 24064
LDS_BYTES = 163840
scr_idx = [0]
def next_scr():
    s = SCR[scr_idx[0] & 1]; scr_idx[0] += 1
    return s

vLane, vKoff, vVoff = 1, 2, 3
vM = [4, 5, 6, 7]
vL4, vL16, vQoff = 8, 9, 10
vXNrd, vWO, vBp, vWORw, vCMBr = 11, 12, 13, 14, 15
vQ = [16, 32]
vO = [48, 56]; vMx = [52, 60]; vMc = [53, 61]; vLs = [54, 62]
vXNw = 55
vH8 = 63
vS = 64; vB = 68; vT = 72
vWQ = 80
T = 100
sK, sV, sWS, sWQ, sWOs = 4, 8, 12, 16, 20
sWave, sHkv, sSplit, sC, sSpin, sTmp = 24, 25, 26, 27, 28, 29
sRet = 30
pX, pK, pV, pWQ, pWO, pBX, pW1, pB1, pW2, pB2, pOut, pDbg, pWS = [32 + 2*i for i in range(13)]
sKV = 58
sTmp2 = 59
sMk = [60, 62, 64]
sSave = 66
sC1 = 68
sB2 = 70
sT3, sT4, sT5 = 71, 72, 73

def vr(b, n=1): return "v%d" % b if n == 1 else "v[%d:%d]" % (b, b+n-1)
def sr(b, n=1): return "s%d" % b if n == 1 else "s[%d:%d]" % (b, b+n-1)
DPPM = "row_mask:0xf bank_mask:0xf"

HALF = [('a', 16*i) for i in range(16)] + [('v', 192+16*i) for i in range(4)]
NSLOT = len(HALF)//2
def hreg(h, j):
    k, b = HALF[h]
    return "%s[%d:%d]" % (k, b+4*j, b+4*j+3)

LDPOL = "nt" if "--nont" not in sys.argv else ""

def srd(d, p, nbytes):
    e("s_mov_b32 s%d, s%d" % (d, p))
    e("s_and_b32 s%d, s%d, 0xffff" % (d+1, p+1))
    e("s_mov_b32 s%d, 0x%x" % (d+2, nbytes))
    e("s_mov_b32 s%d, 0x00020000" % (d+3))

def allreduce(op, v, t):
    for n in (8, 4, 2, 1):
        g.nop(2)
        e("%s_dpp %s, %s, %s row_ror:%d %s" % (op, vr(v), vr(v), vr(v), n, DPPM))
    crossrow(op, v, t)

def crossrow(op, v, t):
    e("v_mov_b32 %s, %s" % (vr(t), vr(v)))
    g.nop(2)
    e("v_permlane16_swap_b32 %s, %s" % (vr(v), vr(t)))
    e("%s %s, %s, %s" % (op, vr(v), vr(v), vr(t)))
    e("v_mov_b32 %s, %s" % (vr(t), vr(v)))
    g.nop(2)
    e("v_permlane32_swap_b32 %s, %s" % (vr(v), vr(t)))
    e("%s %s, %s, %s" % (op, vr(v), vr(v), vr(t)))

def round_bf16(regs, t):
    i = 0
    while i < len(regs):
        if i + 1 < len(regs):
            a, b = regs[i], regs[i+1]
            e("v_cvt_pk_bf16_f32 %s, %s, %s" % (vr(t), vr(a), vr(b)))
            e("v_lshlrev_b32 %s, 16, %s" % (vr(a), vr(t)))
            e("v_and_b32 %s, 0xffff0000, %s" % (vr(b), vr(t)))
            i += 2
        else:
            a = regs[i]
            e("v_cvt_pk_bf16_f32 %s, %s, %s" % (vr(t), vr(a), vr(a)))
            e("v_lshlrev_b32 %s, 16, %s" % (vr(a), vr(t)))
            i += 1

def poll_tail(lab_loop):
    done = g.newlabel("PD")
    e("s_cbranch_vccz %s" % done)
    e("s_cmp_eq_u32 s%d, 0" % sSpin)
    e("s_cbranch_scc1 %s" % done)
    e("s_sub_u32 s%d, s%d, 1" % (sSpin, sSpin))
    e("s_branch %s" % lab_loop)
    g.label(done)

def prologue():
    e("s_cmp_ge_u32 s2, 256")
    e("s_cbranch_scc1 L_end")
    e("s_load_dwordx16 s[32:47], s[0:1], 0")
    e("s_load_dwordx8 s[48:55], s[0:1], 64")
    e("s_load_dwordx2 s[56:57], s[0:1], 96")
    e("v_and_b32 v%d, 63, v0" % vLane)
    e("v_lshrrev_b32 v%d, 6, v0" % vT)
    e("s_and_b32 s%d, s2, 15" % sHkv)
    e("v_readfirstlane_b32 s%d, v%d" % (sWave, vT))
    e("s_lshr_b32 s%d, s2, 4" % sSplit)
    e("s_mov_b32 s%d, 0x%08x" % (sC, f2u(math.log2(math.e)/math.sqrt(128.0))))
    e("s_mov_b32 s%d, 0x20000" % sSpin)
    for i, m in enumerate((0x00F000F0, 0x0F000F00, 0xF000F000)):
        e("s_mov_b32 s%d, 0x%08x" % (sMk[i], m))
        e("s_mov_b32 s%d, 0x%08x" % (sMk[i]+1, m))
    gg, ii, ee = vT+1, vT+2, vT+3
    e("v_lshrrev_b32 v%d, 4, v%d" % (gg, vLane))
    e("v_and_b32 v%d, 15, v%d" % (ii, vLane))
    e("v_and_b32 v%d, 7, v%d" % (ee, vLane))
    e("v_bfe_u32 v%d, v%d, 3, 1" % (vH8, vLane))
    e("v_lshlrev_b32 v%d, 2, v%d" % (vL4, vLane))
    e("v_lshlrev_b32 v%d, 4, v%d" % (vL16, vLane))
    e("v_lshlrev_b32 v%d, 8, v%d" % (vKoff, ii))
    e("v_lshl_add_u32 v%d, v%d, 4, v%d" % (vKoff, gg, vKoff))
    e("v_lshlrev_b32 v%d, 10, v%d" % (vVoff, gg))
    e("v_lshl_add_u32 v%d, v%d, 4, v%d" % (vVoff, ii, vVoff))
    e("v_lshlrev_b32 v%d, 8, v%d" % (vQoff, vH8))
    e("v_lshl_add_u32 v%d, v%d, 4, v%d" % (vQoff, gg, vQoff))
    t0, t1 = vT+4, vT+5
    e("v_and_b32 v%d, 1, v%d" % (t0, vLane))
    e("v_lshlrev_b32 v%d, 4, v%d" % (t0, t0))
    e("v_mov_b32 v%d, 0xffff" % t1)
    e("v_lshlrev_b32 v%d, v%d, v%d" % (t1, t0, t1))
    e("v_lshrrev_b32 v%d, 1, v%d" % (t0, ee))
    for j in range(4):
        e("v_cmp_eq_u32 vcc, %d, v%d" % (j, t0))
        g.nop(2)
        e("v_cndmask_b32 v%d, 0, v%d, vcc" % (vM[j], t1))
    e("v_lshl_add_u32 v%d, v%d, 1, v%d" % (t0, gg, vH8))
    e("v_lshlrev_b32 v%d, 2, v%d" % (vBp, t0))
    e("v_mul_u32_u24 v%d, 1152, v%d" % (vWO, t0))
    e("v_lshl_add_u32 v%d, v%d, 4, v%d" % (vWO, ee, vWO))
    e("s_waitcnt lgkmcnt(0)")
    srd(sK, pK, 128 << 20)
    srd(sV, pV, 128 << 20)
    srd(sWS, pWS, WS_USED)
    srd(sWQ, pWQ, 576*4096*2)
    srd(sWOs, pWO, 4096*576*2)
    e("s_load_dword s%d, s[%d:%d], 0" % (sB2, pB2, pB2+1))
    e("s_lshl_b32 s%d, s%d, 22" % (sKV, sHkv))
    e("s_lshl_b32 s%d, s%d, 18" % (sTmp, sSplit))
    e("s_add_u32 s%d, s%d, s%d" % (sKV, sKV, sTmp))
    e("s_lshl_b32 s%d, s%d, 12" % (sTmp, sWave))
    e("s_add_u32 s%d, s%d, s%d" % (sKV, sKV, sTmp))
    e("s_mul_i32 s%d, s%d, 1280" % (sTmp, sWave))
    e("s_add_u32 s%d, s%d, %d" % (sTmp, sTmp, XN))
    e("v_and_b32 v%d, 3, v%d" % (t0, vLane))
    e("v_mul_u32_u24 v%d, 288, v%d" % (t0, t0))
    e("v_lshl_add_u32 v%d, v%d, 4, v%d" % (t0, gg, t0))
    e("v_add_u32 v%d, s%d, v%d" % (vXNrd, sTmp, t0))
    e("v_lshlrev_b32 v%d, 3, v%d" % (t0, vLane))
    e("v_add_u32 v%d, s%d, v%d" % (vXNw, sTmp, t0))
    e("v_lshrrev_b32 v%d, 5, v%d" % (t0, vLane))
    e("v_and_b32 v%d, 1, v%d" % (t1, gg))
    e("v_lshl_add_u32 v%d, v%d, 5, v%d" % (t1, t1, ee))
    e("v_lshl_add_u32 v%d, v%d, 6, v%d" % (t1, t0, t1))
    e("s_lshl_b32 s%d, s%d, 7" % (sTmp, sWave))
    e("v_add_u32 v%d, s%d, v%d" % (t1, sTmp, t1))
    e("v_lshlrev_b32 v%d, 2, v%d" % (t1, t1))
    e("v_add_u32 v%d, 2048, v%d" % (vWORw, vL4))
    e("v_cmp_eq_u32 vcc, v%d, v%d" % (t0, vH8))
    g.nop(2)
    e("v_cndmask_b32 v%d, v%d, v%d, vcc" % (vWORw, vWORw, t1))
    e("s_and_b32 s%d, s%d, 1" % (sTmp, sWave))
    e("s_lshl_b32 s%d, s%d, 9" % (sTmp, sTmp))
    e("s_lshr_b32 s%d, s%d, 1" % (sTmp2, sWave))
    e("s_lshl_b32 s%d, s%d, 7" % (sTmp2, sTmp2))
    e("s_add_u32 s%d, s%d, s%d" % (sTmp, sTmp, sTmp2))
    e("v_lshlrev_b32 v%d, 8, v%d" % (t0, t0))
    e("v_lshl_add_u32 v%d, v%d, 4, v%d" % (t0, ee, t0))
    e("v_bfe_u32 v%d, v%d, 3, 2" % (t1, vLane))
    e("v_lshl_add_u32 v%d, v%d, 2, v%d" % (t0, t1, t0))
    e("v_add_u32 v%d, s%d, v%d" % (vCMBr, sTmp, t0))

def load_wq():
    t0, t1, t2 = vT, vT+1, vT+2
    e("v_bfe_u32 v%d, v%d, 2, 2" % (t0, vLane))
    e("v_mul_u32_u24 v%d, 144, v%d" % (t0, t0))
    e("v_lshrrev_b32 v%d, 4, v%d" % (t1, vLane))
    e("v_lshl_add_u32 v%d, v%d, 3, v%d" % (t0, t1, t0))
    e("v_lshlrev_b32 v%d, 13, v%d" % (t0, t0))
    e("v_and_b32 v%d, 3, v%d" % (t2, vLane))
    e("v_lshl_add_u32 v%d, v%d, 1, v%d" % (t0, t2, t0))
    e("s_lshl_b32 s%d, s%d, 9" % (sTmp, sHkv))
    e("s_lshl_b32 s%d, s%d, 5" % (sTmp2, sSplit))
    e("s_add_u32 s%d, s%d, s%d" % (sTmp, sTmp, sTmp2))
    e("s_lshl_b32 s%d, s%d, 3" % (sTmp2, sWave))
    e("s_add_u32 s%d, s%d, s%d" % (sTmp, sTmp, sTmp2))
    e("v_add_u32 v%d, s%d, v%d" % (t0, sTmp, t0))
    e("v_mov_b32 v%d, 0x7ffffff0" % t2)
    e("v_cmp_gt_u32 vcc, 2, v%d" % t1)
    g.nop(2)
    e("v_cndmask_b32 v%d, v%d, v%d, vcc" % (t2, t2, t0))
    last = None
    for t in range(5):
        for ee in range(8):
            e("s_mov_b32 s%d, 0x%x" % (sTmp, (32*t+ee)*8192))
            last = g.vm("buffer_load_ushort v%d, v%d, s[%d:%d], s%d offen" % (192+8*t+ee, t2 if t == 4 else t0, sWQ, sWQ+3, sTmp))
    return last

def pack_wq(idx):
    g.wait_vm(idx)
    for k in range(20):
        e("v_lshl_or_b32 v%d, v%d, 16, v%d" % (vWQ+k, 192+2*k+1, 192+2*k))

def clear_ws():
    t = vT+4
    for i in range(4):
        e("v_mov_b32 v%d, -1" % (t+i))
    e("s_lshl_b32 s%d, s2, 13" % sTmp)
    e("s_lshl_b32 s%d, s%d, 11" % (sTmp2, sWave))
    e("s_add_u32 s%d, s%d, s%d" % (sTmp, sTmp, sTmp2))
    e("s_add_u32 s%d, s%d, 0x%x" % (sTmp, sTmp, CLR0))
    g.vm("buffer_store_dwordx4 v[%d:%d], v%d, s[%d:%d], s%d offen sc1" % (t, t+3, vL16, sWS, sWS+3, sTmp))
    g.vm("buffer_store_dwordx4 v[%d:%d], v%d, s[%d:%d], s%d offen offset:1024 sc1" % (t, t+3, vL16, sWS, sWS+3, sTmp))
    g.nop(2)

def load_x0(b, X):
    t = vT
    e("v_lshlrev_b32 v%d, 3, v%d" % (t, vLane))
    e("v_lshlrev_b32 v%d, 1, v%d" % (t+1, vLane))
    g.vm("global_load_dwordx2 v[%d:%d], v%d, s[%d:%d] offset:%d" % (X+10, X+11, t, pX, pX+1, b*1152))
    g.vm("global_load_dwordx2 v[%d:%d], v%d, s[%d:%d] offset:%d" % (X+12, X+13, t, pX, pX+1, b*1152+512))
    return g.vm("global_load_ushort v%d, v%d, s[%d:%d] offset:%d" % (X+14, t+1, pX, pX+1, b*1152+1024))

def unpack_x0(X):
    for k in range(4):
        e("v_lshlrev_b32 v%d, 16, v%d" % (X+2*k, X+10+k))
        e("v_and_b32 v%d, 0xffff0000, v%d" % (X+2*k+1, X+10+k))
    e("v_lshlrev_b32 v%d, 16, v%d" % (X+8, X+14))

def store_xs(b, X):
    e("ds_write_b128 v%d, v[%d:%d] offset:%d" % (vL16, X, X+3, XS[b]))
    e("ds_write_b128 v%d, v[%d:%d] offset:%d" % (vL16, X+4, X+7, XS[b]+1024))
    e("ds_write_b32 v%d, v%d offset:%d" % (vL4, X+8, XS[b]+2048))

def ln_stats(X, D, mean, var, t):
    e("v_add_f32 v%d, v%d, v%d" % (mean, X, X+1))
    for i in range(2, 9):
        e("v_add_f32 v%d, v%d, v%d" % (mean, mean, X+i))
    allreduce("v_add_f32", mean, t)
    e("v_mul_f32 v%d, 0x%08x, v%d" % (mean, f2u(1.0/576), mean))
    for i in range(9):
        e("v_sub_f32 v%d, v%d, v%d" % (D+i, X+i, mean))
    e("v_mul_f32 v%d, v%d, v%d" % (var, D, D))
    for i in range(1, 9):
        e("v_fmac_f32 v%d, v%d, v%d" % (var, D+i, D+i))
    allreduce("v_add_f32", var, t)
    e("v_mul_f32 v%d, 0x%08x, v%d" % (var, f2u(1.0/576), var))

def q_stage(L, b, X, wq_ready):
    g.c("q_stage L=%d b=%d" % (L, b))
    D = X+10; mean = X+20; var = X+21; t = X+22; A = X+24
    ln_stats(X, D, mean, var, t)
    e("v_add_f32 v%d, 0x%08x, v%d" % (var, f2u(1e-5), var))
    e("v_rsq_f32 v%d, v%d" % (var, var))
    g.nop(1)
    for i in range(9):
        e("v_mul_f32 v%d, v%d, v%d" % (D+i, D+i, var))
    for k in range(4):
        e("v_cvt_pk_bf16_f32 v%d, v%d, v%d" % (A+k, D+2*k, D+2*k+1))
    e("v_cvt_pk_bf16_f32 v%d, v%d, v%d" % (A+4, D+8, D+8))
    e("v_mov_b32 v%d, 0" % (A+5))
    e("v_lshlrev_b32 v%d, 1, v%d" % (t, vLane))
    e("v_lshl_add_u32 v%d, v%d, 1, v%d" % (t+1, t, t))
    e("v_sub_u32 v%d, v%d, v%d" % (t, vXNw, t+1))
    e("v_lshlrev_b32 v%d, 3, v%d" % (t+1, vLane))
    e("v_sub_u32 v%d, v%d, v%d" % (t+1, vXNw, t+1))
    e("v_and_b32 v%d, 28, v%d" % (A+6, vL4))
    e("v_add_u32 v%d, v%d, v%d" % (t+1, t+1, A+6))
    e("ds_write_b64 v%d, v[%d:%d]" % (vXNw, A, A+1))
    e("ds_write_b64 v%d, v[%d:%d] offset:512" % (vXNw, A+2, A+3))
    e("ds_write_b16 v%d, v%d offset:1024" % (t, A+4))
    e("ds_write_b32 v%d, v%d offset:1152" % (t+1, A+5))
    g.lgkm0()
    for tt in range(5):
        e("ds_read_b128 v[%d:%d], v%d offset:%d" % (A+4*tt, A+4*tt+3, vXNrd, 64*tt))
    if wq_ready is not None:
        g.wait_vm(wq_ready)
    g.lgkm0()
    R = X+20
    for tt in range(5):
        e("v_mfma_f32_16x16x32_bf16 v[%d:%d], v[%d:%d], v[%d:%d], %s" % (R, R+3, A+4*tt, A+4*tt+3, vWQ+4*tt, vWQ+4*tt+3, "0" if tt == 0 else "v[%d:%d]" % (R, R+3)))
    g.nop(8)
    for k in range(3):
        e("v_cndmask_b32 v%d, v%d, v%d, s[%d:%d]" % (R, R, R+1+k, sMk[k], sMk[k]+1))
    for n in (4, 8):
        g.nop(2)
        e("v_add_f32_dpp v%d, v%d, v%d row_ror:%d %s" % (R, R, R, n, DPPM))
    g.nop(2)
    e("v_mov_b32_dpp v%d, v%d quad_perm:[1,1,3,3] %s" % (R+1, R, DPPM))
    e("v_cvt_pk_bf16_f32 v%d, v%d, v%d" % (R, R, R+1))
    e("v_min_u32 v%d, -2, v%d" % (R, R))
    e("s_lshl_b32 s%d, s%d, 9" % (sTmp, sHkv))
    e("s_lshl_b32 s%d, s%d, 5" % (sTmp2, sSplit))
    e("s_add_u32 s%d, s%d, s%d" % (sTmp, sTmp, sTmp2))
    e("s_lshl_b32 s%d, s%d, 3" % (sTmp2, sWave))
    e("s_add_u32 s%d, s%d, s%d" % (sTmp, sTmp, sTmp2))
    e("s_add_u32 s%d, s%d, 0x%x" % (sTmp, sTmp, QOFF(L, b)))
    e("v_lshlrev_b32 v%d, 1, v%d" % (R+1, vLane))
    e("s_mov_b64 exec, 5")
    idx = g.vm("buffer_store_dword v%d, v%d, s[%d:%d], s%d offen sc1" % (R, R+1, sWS, sWS+3, sTmp))
    e("s_mov_b64 exec, -1")
    return idx

def q_gather(L, b, check=True):
    g.c("q_gather L=%d b=%d" % (L, b))
    lab = g.newlabel("PQ")
    e("s_lshl_b32 s%d, s%d, 9" % (sTmp, sHkv))
    e("s_add_u32 s%d, s%d, 0x%x" % (sTmp, sTmp, QOFF(L, b)))
    g.label(lab)
    Q = vQ[b]
    for j in range(4):
        g.vm("buffer_load_dwordx4 v[%d:%d], v%d, s[%d:%d], s%d offen offset:%d sc1" % (Q+4*j, Q+4*j+3, vQoff, sWS, sWS+3, sTmp, 64*j))
    g.wait_vm_all()
    if check:
        t = vT
        e("v_max3_u32 v%d, v%d, v%d, v%d" % (t, Q, Q+1, Q+2))
        for k in range(3, 15, 2):
            e("v_max3_u32 v%d, v%d, v%d, v%d" % (t, t, Q+k, Q+k+1))
        e("v_max_u32 v%d, v%d, v%d" % (t, t, Q+15))
        e("v_cmp_eq_u32 vcc, -1, v%d" % t)
        poll_tail(lab)

def counter_wait(all16):
    lab = g.newlabel("PC")
    t = vT
    if all16:
        e("v_and_b32 v%d, 60, v%d" % (t+1, vL4))
    else:
        e("s_lshl_b32 s%d, s%d, 2" % (sTmp, sHkv))
        e("v_mov_b32 v%d, s%d" % (t+1, sTmp))
    g.label(lab)
    g.vm("global_load_dword v%d, v%d, s[%d:%d] sc1" % (t, t+1, pDbg, pDbg+1))
    g.wait_vm_all()
    e("v_cmp_gt_u32 vcc, 16, v%d" % t)
    poll_tail(lab)

def acc_init(b):
    for r in range(4):
        e("v_mov_b32 v%d, 0" % (vO[b]+r))
    e("v_mov_b32 v%d, 0xff800000" % vMx[b])
    e("v_mov_b32 v%d, 0xff800000" % vMc[b])
    e("v_mov_b32 v%d, 0" % vLs[b])

def unit_load(b, u, slot):
    off = b*(64 << 20) + u*16384
    e("s_add_u32 s%d, s%d, 0x%x" % (sTmp, sKV, off))
    for j in range(4):
        ik = g.vm("buffer_load_dwordx4 %s, v%d, s[%d:%d], s%d offen offset:%d %s" % (hreg(2*slot, j), vKoff, sK, sK+3, sTmp, 64*j, LDPOL))
    for j in range(4):
        iv = g.vm("buffer_load_dwordx4 %s, v%d, s[%d:%d], s%d offen offset:%d %s" % (hreg(2*slot+1, j), vVoff, sV, sV+3, sTmp, 256*j, LDPOL))
    return (ik, iv)

def unit_compute(b, slot, ids):
    Q = vQ[b]; S = vS; B = vB; t = vT
    if ids: g.wait_vm(ids[0])
    for j in range(4):
        e("v_mfma_f32_16x16x32_bf16 v[%d:%d], %s, v[%d:%d], %s" % (S, S+3, hreg(2*slot, j), Q+4*j, Q+4*j+3, "0" if j == 0 else "v[%d:%d]" % (S, S+3)))
    g.nop(8)
    e("v_max3_f32 v%d, v%d, v%d, v%d" % (t, S, S+1, S+2))
    e("v_max_f32 v%d, v%d, v%d" % (t, t, S+3))
    e("v_cmp_gt_f32 vcc, v%d, v%d" % (t, vMx[b]))
    stub = g.newlabel("RS"); cont = g.newlabel("RC")
    e("s_cbranch_vccnz %s" % stub)
    g.label(cont)
    g.stubs.append((stub, cont, b))
    for r in range(4):
        e("v_fma_f32 v%d, v%d, s%d, -v%d" % (S+r, S+r, sC, vMc[b]))
    for r in range(4):
        e("v_exp_f32 v%d, v%d" % (S+r, S+r))
    if ids: g.wait_vm(ids[1])
    for r in range(4):
        e("v_cvt_pk_bf16_f32 v%d, v%d, v%d" % (t+1, S+r, S+r))
        for j in range(4):
            e("v_and_b32 v%d, v%d, v%d" % (B+j, t+1, vM[j]))
        e("v_add_f32 v%d, v%d, v%d" % (vLs[b], vLs[b], S+r))
        g.nop(1)
        e("v_mfma_f32_16x16x32_bf16 v[%d:%d], %s, v[%d:%d], v[%d:%d]" % (vO[b], vO[b]+3, hreg(2*slot+1, r), B, B+3, vO[b], vO[b]+3))

def rescale_subs():
    for b in range(2):
        g.label("RESCALE%d" % b)
        t = vT
        e("v_max_f32 v%d, v%d, v%d" % (t, t, vMx[b]))
        crossrow("v_max_f32", t, t+1)
        e("v_mov_b32 v%d, v%d" % (vMx[b], t))
        e("v_mul_f32 v%d, s%d, v%d" % (t, sC, t))
        e("v_sub_f32 v%d, v%d, v%d" % (t+1, vMc[b], t))
        e("v_exp_f32 v%d, v%d" % (t+1, t+1))
        e("v_mov_b32 v%d, v%d" % (vMc[b], t))
        e("v_mul_f32 v%d, v%d, v%d" % (vLs[b], vLs[b], t+1))
        for r in range(4):
            e("v_mul_f32 v%d, v%d, v%d" % (vO[b]+r, vO[b]+r, t+1))
        e("s_setpc_b64 s[%d:%d]" % (sRet, sRet+1))
    for stub, cont, b in g.stubs:
        g.label(stub)
        e("s_call_b64 s[%d:%d], RESCALE%d" % (sRet, sRet+1, b))
        e("s_branch %s" % cont)

def combine_publish(L, b):
    g.c("combine_publish L=%d b=%d" % (L, b))
    sc = next_scr()
    t = vT
    g.nop(8)
    crossrow("v_add_f32", vLs[b], t)
    e("s_lshl_b32 s%d, s%d, 10" % (sTmp, sWave))
    e("v_add_u32 v%d, s%d, v%d" % (t, sTmp, vL16))
    e("ds_write_b128 v%d, v[%d:%d] offset:%d" % (t, vO[b], vO[b]+3, sc))
    e("s_lshl_b32 s%d, s%d, 3" % (sTmp, sWave))
    e("v_lshlrev_b32 v%d, 5, v%d" % (t+1, vH8))
    e("v_add_u32 v%d, s%d, v%d" % (t+1, sTmp, t+1))
    e("v_mov_b32 v%d, v%d" % (t+2, vMc[b]))
    e("v_mov_b32 v%d, v%d" % (t+3, vLs[b]))
    e("ds_write_b64 v%d, v[%d:%d] offset:%d" % (t+1, t+2, t+3, sc+4096))
    g.lgkm0()
    e("s_barrier")
    X = T
    for i in range(4):
        e("ds_read_b32 v%d, v%d offset:%d" % (X+i, vCMBr, sc+1024*i))
    e("s_lshr_b32 s%d, s%d, 1" % (sTmp, sWave))
    e("s_lshl_b32 s%d, s%d, 5" % (sTmp, sTmp))
    e("v_mov_b32 v%d, s%d" % (t, sTmp))
    e("ds_read_b128 v[%d:%d], v%d offset:%d" % (X+4, X+7, t, sc+4096))
    e("ds_read_b128 v[%d:%d], v%d offset:%d" % (X+8, X+11, t, sc+4096+16))
    g.lgkm0()
    M = X+12; Lr = X+13
    e("v_max3_f32 v%d, v%d, v%d, v%d" % (M, X+4, X+6, X+8))
    e("v_max_f32 v%d, v%d, v%d" % (M, M, X+10))
    for i in range(4):
        e("v_sub_f32 v%d, v%d, v%d" % (X+4+2*i, X+4+2*i, M))
    for i in range(4):
        e("v_exp_f32 v%d, v%d" % (X+4+2*i, X+4+2*i))
    g.nop(1)
    e("v_mul_f32 v%d, v%d, v%d" % (X+14, X, X+4))
    e("v_mul_f32 v%d, v%d, v%d" % (Lr, X+5, X+4))
    for i in range(1, 4):
        e("v_fmac_f32 v%d, v%d, v%d" % (X+14, X+i, X+4+2*i))
        e("v_fmac_f32 v%d, v%d, v%d" % (Lr, X+5+2*i, X+4+2*i))
    Lb = L*2+b
    e("s_lshl_b32 s%d, s%d, 14" % (sTmp, sHkv))
    e("s_lshl_b32 s%d, s%d, 10" % (sTmp2, sSplit))
    e("s_add_u32 s%d, s%d, s%d" % (sTmp, sTmp, sTmp2))
    e("s_lshl_b32 s%d, s%d, 8" % (sTmp2, sWave))
    e("s_add_u32 s%d, s%d, s%d" % (sTmp, sTmp, sTmp2))
    e("s_add_u32 s%d, s%d, 0x%x" % (sTmp, sTmp, ROFF + Lb*262144))
    g.vm("buffer_store_dword v%d, v%d, s[%d:%d], s%d offen sc1" % (X+14, vL4, sWS, sWS+3, sTmp))
    e("s_lshl_b32 s%d, s%d, 8" % (sTmp, sHkv))
    e("s_lshr_b32 s%d, s%d, 1" % (sTmp2, sWave))
    e("s_lshl_b32 s%d, s%d, 7" % (sTmp2, sTmp2))
    e("s_add_u32 s%d, s%d, s%d" % (sTmp, sTmp, sTmp2))
    e("s_lshl_b32 s%d, s%d, 3" % (sTmp2, sSplit))
    e("s_add_u32 s%d, s%d, s%d" % (sTmp, sTmp, sTmp2))
    e("s_add_u32 s%d, s%d, 0x%x" % (sTmp, sTmp, MOFF + Lb*4096))
    e("s_mov_b64 exec, 1")
    g.vm("buffer_store_dwordx2 v[%d:%d], v%d, s[%d:%d], s%d offen sc1" % (M, M+1, vL4, sWS, sWS+3, sTmp))
    e("s_mov_b64 exec, -1")

WOA = T+56
def load_wo():
    e("s_lshl_b32 s%d, s%d, 8" % (sTmp, sHkv))
    e("s_lshl_b32 s%d, s%d, 6" % (sTmp2, sWave))
    e("s_add_u32 s%d, s%d, s%d" % (sTmp, sTmp, sTmp2))
    e("s_mul_i32 s%d, s%d, 1152" % (sTmp, sTmp))
    e("s_min_u32 s%d, s%d, 8" % (sTmp2, sSplit))
    e("s_lshl_b32 s%d, s%d, 7" % (sTmp2, sTmp2))
    e("s_add_u32 s%d, s%d, s%d" % (sTmp, sTmp, sTmp2))
    for t in range(8):
        idx = g.vm("buffer_load_dwordx4 v[%d:%d], v%d, s[%d:%d], s%d offen" % (WOA+4*t, WOA+4*t+3, vWO, sWOs, sWOs+3, sTmp))
        if t < 7: e("s_add_u32 s%d, s%d, 9216" % (sTmp, sTmp))
    return idx

def wo_stage(L, b):
    g.c("wo_stage L=%d b=%d" % (L, b))
    sc = next_scr()
    Lb = L*2+b
    skip = g.newlabel("WS")
    st = g.cond_begin()
    e("s_cmp_ge_u32 s%d, 9" % sSplit)
    e("s_cbranch_scc1 %s" % skip)
    X = T; ML = T+16; o = T+18; t = T+19; t2 = T+20; BP = T+24; Bq = T+32; D = T+36
    e("s_lshl_b32 s%d, s%d, 14" % (sT3, sHkv))
    e("s_lshl_b32 s%d, s%d, 8" % (sTmp2, sWave))
    e("s_add_u32 s%d, s%d, s%d" % (sT3, sT3, sTmp2))
    e("s_add_u32 s%d, s%d, 0x%x" % (sT3, sT3, ROFF + Lb*262144))
    e("s_lshl_b32 s%d, s%d, 8" % (sT4, sHkv))
    e("s_lshr_b32 s%d, s%d, 1" % (sTmp2, sWave))
    e("s_lshl_b32 s%d, s%d, 7" % (sTmp2, sTmp2))
    e("s_add_u32 s%d, s%d, s%d" % (sT4, sT4, sTmp2))
    e("s_add_u32 s%d, s%d, 0x%x" % (sT4, sT4, MOFF + Lb*4096))
    e("v_and_b32 v%d, 15, v%d" % (t2+1, vLane))
    e("v_lshlrev_b32 v%d, 3, v%d" % (t2+1, t2+1))
    lab = g.newlabel("PW")
    g.label(lab)
    g.vm("buffer_load_dwordx2 v[%d:%d], v%d, s[%d:%d], s%d offen sc1" % (ML, ML+1, t2+1, sWS, sWS+3, sT4))
    e("s_mov_b32 s%d, s%d" % (sTmp, sT3))
    for s in range(16):
        g.vm("buffer_load_dword v%d, v%d, s[%d:%d], s%d offen offset:%d sc1" % (X+s, vL4, sWS, sWS+3, sTmp, (s & 3)*1024))
        if (s & 3) == 3 and s < 15: e("s_add_u32 s%d, s%d, 4096" % (sTmp, sTmp))
    g.wait_vm_all()
    e("v_mov_b32 v%d, v%d" % (t, ML))
    for n in (8, 4, 2, 1):
        g.nop(2)
        e("v_max_f32_dpp v%d, v%d, v%d row_ror:%d %s" % (t, t, t, n, DPPM))
    e("v_sub_f32 v%d, v%d, v%d" % (t, ML, t))
    e("v_exp_f32 v%d, v%d" % (t, t))
    g.nop(1)
    e("v_mul_f32 v%d, v%d, v%d" % (t2, t, ML+1))
    for n in (8, 4, 2, 1):
        g.nop(2)
        e("v_add_f32_dpp v%d, v%d, v%d row_ror:%d %s" % (t2, t2, t2, n, DPPM))
    e("v_rcp_f32 v%d, v%d" % (t2, t2))
    e("v_mov_b32 v%d, 0" % o)
    e("v_mul_f32 v%d, v%d, v%d" % (t, t, t2))
    g.nop(2)
    for s in range(16):
        e("v_fmac_f32_dpp v%d, v%d, v%d row_newbcast:%d %s" % (o, t, X+s, s, DPPM))
    e("v_cmp_u_f32 vcc, v%d, v%d" % (o, o))
    poll_tail(lab)
    e("v_cvt_pk_bf16_f32 v%d, v%d, v%d" % (o, o, o))
    for tt in range(8):
        e("ds_bpermute_b32 v%d, v%d, v%d offset:%d" % (BP+tt, vBp, o, 32*tt))
    g.lgkm0()
    for tt in range(8):
        for j in range(4):
            e("v_and_b32 v%d, v%d, v%d" % (Bq+j, BP+tt, vM[j]))
        g.nop(2)
        e("v_mfma_f32_16x16x32_bf16 v[%d:%d], v[%d:%d], v[%d:%d], %s" % (D, D+3, WOA+4*tt, WOA+4*tt+3, Bq, Bq+3, "0" if tt == 0 else "v[%d:%d]" % (D, D+3)))
    g.nop(8)
    for r in range(4):
        e("ds_write_b32 v%d, v%d offset:%d" % (vWORw, D+r, sc+32*r))
    g.lgkm0()
    g.label(skip)
    g.cond_end(st)
    e("s_barrier")
    skip2 = g.newlabel("WS")
    st = g.cond_begin()
    e("s_cmp_ge_u32 s%d, 9" % sSplit)
    e("s_cbranch_scc1 %s" % skip2)
    e("s_cmp_lg_u32 s%d, 0" % sWave)
    e("s_cbranch_scc1 %s" % skip2)
    for i in range(8):
        e("ds_read_b32 v%d, v%d offset:%d" % (X+i, vL4, sc+256*i))
    e("s_mul_i32 s%d, s%d, 2304" % (sTmp, sHkv))
    e("s_lshl_b32 s%d, s%d, 8" % (sTmp2, sSplit))
    e("s_add_u32 s%d, s%d, s%d" % (sTmp, sTmp, sTmp2))
    e("s_add_u32 s%d, s%d, 0x%x" % (sTmp, sTmp, WOFF + Lb*36864))
    g.lgkm0()
    for i in range(4):
        e("v_add_f32 v%d, v%d, v%d" % (X+i, X+i, X+4+i))
    e("v_add_f32 v%d, v%d, v%d" % (X, X, X+1))
    e("v_add_f32 v%d, v%d, v%d" % (X+2, X+2, X+3))
    e("v_add_f32 v%d, v%d, v%d" % (X, X, X+2))
    g.vm("buffer_store_dword v%d, v%d, s[%d:%d], s%d offen sc1" % (X, vL4, sWS, sWS+3, sTmp))
    g.label(skip2)
    g.cond_end(st)

def gather4(X, sbase):
    lab = g.newlabel("PG")
    g.label(lab)
    e("s_mov_b32 s%d, s%d" % (sTmp, sbase))
    for p in range(4):
        R = X+12*p
        g.vm("buffer_load_dwordx4 v[%d:%d], v%d, s[%d:%d], s%d offen sc1" % (R, R+3, vL16, sWS, sWS+3, sTmp))
        g.vm("buffer_load_dwordx4 v[%d:%d], v%d, s[%d:%d], s%d offen offset:1024 sc1" % (R+4, R+7, vL16, sWS, sWS+3, sTmp))
        g.vm("buffer_load_dword v%d, v%d, s[%d:%d], s%d offen offset:2048 sc1" % (R+8, vL4, sWS, sWS+3, sTmp))
        if p < 3: e("s_add_u32 s%d, s%d, 2304" % (sTmp, sTmp))
    g.wait_vm_all()
    for i in range(9):
        e("v_add_f32 v%d, v%d, v%d" % (X+i, X+i, X+12+i))
        e("v_add_f32 v%d, v%d, v%d" % (X+24+i, X+24+i, X+36+i))
    for i in range(9):
        e("v_add_f32 v%d, v%d, v%d" % (X+i, X+i, X+24+i))
    t = X+12
    e("v_add_f32 v%d, v%d, v%d" % (t, X, X+1))
    for i in range(2, 9):
        e("v_add_f32 v%d, v%d, v%d" % (t, t, X+i))
    e("v_cmp_u_f32 vcc, v%d, v%d" % (t, t))
    poll_tail(lab)

MW = T+56
def load_mlpw():
    t = vT
    e("v_mul_u32_u24 v%d, 12, v%d" % (t, vLane))
    e("s_mul_i32 s%d, s%d, 2304" % (sTmp, sWave))
    e("v_add_u32 v%d, s%d, v%d" % (t, sTmp, t))
    for a, p in enumerate((pW1, pB1, pW2)):
        for k in range(3):
            idx = g.vm("global_load_dwordx3 v[%d:%d], v%d, s[%d:%d] offset:%d" % (MW+12*a+4*k, MW+12*a+4*k+2, t, p, p+1, 768*k))
    return idx
def mwreg(a, k): return MW + 12*a + 4*(k//3) + (k % 3)

def x_stage(L, b):
    g.c("x_stage L=%d b=%d" % (L, b))
    sc = next_scr()
    Lb = L*2+b
    X = T
    e("s_mul_i32 s%d, s%d, %d" % (sT3, sWave, 4*2304))
    e("s_add_u32 s%d, s%d, 0x%x" % (sT3, sT3, WOFF + Lb*36864))
    gather4(X, sT3)
    t = X+12
    e("s_mul_i32 s%d, s%d, 2304" % (sTmp, sWave))
    e("v_add_u32 v%d, s%d, v%d" % (t, sTmp, vL16))
    e("v_add_u32 v%d, s%d, v%d" % (t+1, sTmp, vL4))
    e("ds_write_b128 v%d, v[%d:%d] offset:%d" % (t, X, X+3, sc))
    e("ds_write_b128 v%d, v[%d:%d] offset:%d" % (t, X+4, X+7, sc+1024))
    e("ds_write_b32 v%d, v%d offset:%d" % (t+1, X+8, sc+2048))
    g.lgkm0()
    e("s_barrier")
    for p in range(4):
        R = X+12*p
        e("ds_read_b128 v[%d:%d], v%d offset:%d" % (R, R+3, vL16, sc+2304*p))
        e("ds_read_b128 v[%d:%d], v%d offset:%d" % (R+4, R+7, vL16, sc+2304*p+1024))
        e("ds_read_b32 v%d, v%d offset:%d" % (R+8, vL4, sc+2304*p+2048))
    g.lgkm0()
    for i in range(9):
        e("v_add_f32 v%d, v%d, v%d" % (X+i, X+i, X+12+i))
        e("v_add_f32 v%d, v%d, v%d" % (X+24+i, X+24+i, X+36+i))
    R = X+12
    e("ds_read_b128 v[%d:%d], v%d offset:%d" % (R, R+3, vL16, XS[b]))
    e("ds_read_b128 v[%d:%d], v%d offset:%d" % (R+4, R+7, vL16, XS[b]+1024))
    e("ds_read_b32 v%d, v%d offset:%d" % (R+8, vL4, XS[b]+2048))
    for i in range(9):
        e("v_add_f32 v%d, v%d, v%d" % (X+i, X+i, X+24+i))
    round_bf16([X+i for i in range(9)], X+36)
    g.lgkm0()
    for i in range(9):
        e("v_add_f32 v%d, v%d, v%d" % (X+i, X+i, R+i))
    round_bf16([X+i for i in range(9)], X+36)
    e("s_barrier")
    store_xs(b, X)

def mlp_stage(L, b, mw_ready):
    g.c("mlp_stage L=%d b=%d" % (L, b))
    X = T; D = T+10; mean = T+20; var = T+21; t = T+22
    ln_stats(X, D, mean, var, t)
    e("v_add_f32 v%d, 0x%08x, v%d" % (t, f2u(1e-5), var))
    e("v_rsq_f32 v%d, v%d" % (t, t))
    g.nop(1)
    e("v_mul_f32 v%d, v%d, v%d" % (var, var, t))
    e("v_mul_f32 v%d, v%d, v%d" % (var, var, t))
    e("v_add_f32 v%d, 0x%08x, v%d" % (var, f2u(1e-5), var))
    e("v_rsq_f32 v%d, v%d" % (var, var))
    g.nop(1)
    e("v_mul_f32 v%d, v%d, v%d" % (var, var, t))
    H = [T+24, T+26, T+28]
    e("s_min_u32 s%d, s2, 191" % sTmp)
    e("s_mul_i32 s%d, s%d, 12" % (sTmp, sTmp))
    e("v_mov_b32 v%d, s%d" % (t, sTmp))
    for k in range(3):
        e("ds_read_b32 v%d, v%d offset:%d" % (H[k]+1, t, XS[b]+4*k))
    g.lgkm0()
    for k in range(3):
        e("v_sub_f32 v%d, v%d, v%d" % (H[k], H[k]+1, mean))
        e("v_mul_f32 v%d, v%d, v%d" % (H[k], H[k], var))
    for k in range(3):
        round_bf16([H[k]], t)
    c0 = -2.0*math.sqrt(2.0/math.pi)*math.log2(math.e)
    c1 = c0*0.044715
    C0 = T+30
    e("v_mov_b32 v%d, 0x%08x" % (C0, f2u(c0)))
    e("s_mov_b32 s%d, 0x%08x" % (sC1, f2u(c1)))
    e("s_mov_b32 s%d, 0x%08x" % (sC1+1, f2u(c1)))
    ACC = [T+32, T+34, T+36]
    for k in range(3):
        e("v_mov_b32 v%d, 0" % ACC[k]); e("v_mov_b32 v%d, 0" % (ACC[k]+1))
    W = [T+10, T+12, T+14]
    U = [T+38, T+40, T+42]; A = [T+44, T+46, T+48]; G_ = [T+50, T+52, T+54]
    if mw_ready is not None: g.wait_vm(mw_ready)
    def p(r): return "v[%d:%d]" % (r, r+1)
    for k in range(9):
        for a in range(3):
            e("v_lshlrev_b32 v%d, 16, v%d" % (W[a], mwreg(a, k)))
            e("v_and_b32 v%d, 0xffff0000, v%d" % (W[a]+1, mwreg(a, k)))
        for el in range(3):
            e("v_pk_fma_f32 %s, %s, %s, %s op_sel_hi:[0,1,1]" % (p(U[el]), p(H[el]), p(W[0]), p(W[1])))
        for el in range(3):
            e("v_pk_mul_f32 %s, %s, %s" % (p(A[el]), p(U[el]), p(U[el])))
        for el in range(3):
            e("v_pk_fma_f32 %s, %s, s[%d:%d], %s op_sel_hi:[1,1,0]" % (p(A[el]), p(A[el]), sC1, sC1+1, p(C0)))
        for el in range(3):
            e("v_pk_mul_f32 %s, %s, %s" % (p(A[el]), p(A[el]), p(U[el])))
        for el in range(3):
            e("v_exp_f32 v%d, v%d" % (A[el], A[el]))
            e("v_exp_f32 v%d, v%d" % (A[el]+1, A[el]+1))
        for el in range(3):
            e("v_pk_mul_f32 %s, %s, %s" % (p(G_[el]), p(U[el]), p(W[2])))
        for el in range(3):
            e("v_pk_add_f32 %s, %s, 1.0 op_sel_hi:[1,0]" % (p(A[el]), p(A[el])))
        for el in range(3):
            e("v_rcp_f32 v%d, v%d" % (A[el], A[el]))
            e("v_rcp_f32 v%d, v%d" % (A[el]+1, A[el]+1))
        g.nop(1)
        for el in range(3):
            e("v_pk_fma_f32 %s, %s, %s, %s" % (p(ACC[el]), p(G_[el]), p(A[el]), p(ACC[el])))
    for el in range(3):
        e("v_add_f32 v%d, v%d, v%d" % (ACC[el], ACC[el], ACC[el]+1))
    for el in range(3):
        allreduce("v_add_f32", ACC[el], t)
    e("v_cmp_eq_u32 vcc, 1, v%d" % vLane)
    g.nop(2)
    e("v_cndmask_b32 v%d, v%d, v%d, vcc" % (ACC[0], ACC[0], ACC[1]))
    e("v_cmp_eq_u32 vcc, 2, v%d" % vLane)
    g.nop(2)
    e("v_cndmask_b32 v%d, v%d, v%d, vcc" % (ACC[0], ACC[0], ACC[2]))
    return ACC[0], H

def mlp_publish(b, R):
    skip = g.newlabel("MS")
    st = g.cond_begin()
    e("s_cmp_ge_u32 s2, 192")
    e("s_cbranch_scc1 %s" % skip)
    e("s_mul_i32 s%d, s%d, 2304" % (sTmp, sWave))
    e("s_mul_i32 s%d, s2, 12" % sTmp2)
    e("s_add_u32 s%d, s%d, s%d" % (sTmp, sTmp, sTmp2))
    e("s_add_u32 s%d, s%d, 0x%x" % (sTmp, sTmp, YOFF + b*4*2304))
    e("s_mov_b64 exec, 7")
    g.vm("buffer_store_dword v%d, v%d, s[%d:%d], s%d offen sc1" % (R, vL4, sWS, sWS+3, sTmp))
    e("s_mov_b64 exec, -1")
    g.label(skip)
    g.cond_end(st)

def y_stage(b):
    g.c("y_stage b=%d" % b)
    X = T
    e("s_mov_b32 s%d, 0x%x" % (sT3, YOFF + b*4*2304))
    gather4(X, sT3)
    R = X+12
    e("ds_read_b128 v[%d:%d], v%d offset:%d" % (R, R+3, vL16, XS[b]))
    e("ds_read_b128 v[%d:%d], v%d offset:%d" % (R+4, R+7, vL16, XS[b]+1024))
    e("ds_read_b32 v%d, v%d offset:%d" % (R+8, vL4, XS[b]+2048))
    round_bf16([X+i for i in range(9)], X+36)
    for i in range(9):
        e("v_add_f32 v%d, s%d, v%d" % (X+i, sB2, X+i))
    round_bf16([X+i for i in range(9)], X+36)
    g.lgkm0()
    for i in range(9):
        e("v_add_f32 v%d, v%d, v%d" % (X+i, X+i, R+i))
    round_bf16([X+i for i in range(9)], X+36)
    e("s_barrier")
    store_xs(b, X)

def final_out(b, R):
    g.c("final_out b=%d" % b)
    sc = next_scr()
    t = T+10
    e("s_lshl_b32 s%d, s%d, 8" % (sTmp, sWave))
    e("v_add_u32 v%d, s%d, v%d" % (t, sTmp, vL4))
    e("ds_write_b32 v%d, v%d offset:%d" % (t, R, sc))
    g.lgkm0()
    e("s_barrier")
    skip = g.newlabel("FS")
    st = g.cond_begin()
    e("s_cmp_ge_u32 s2, 192")
    e("s_cbranch_scc1 %s" % skip)
    e("s_cmp_lg_u32 s%d, 0" % sWave)
    e("s_cbranch_scc1 %s" % skip)
    for i in range(4):
        e("ds_read_b32 v%d, v%d offset:%d" % (t+1+i, vL4, sc+256*i))
    e("s_mul_i32 s%d, s2, 12" % sTmp)
    e("v_and_b32 v%d, 12, v%d" % (t, vL4))
    e("v_add_u32 v%d, s%d, v%d" % (t, sTmp, t))
    e("ds_read_b32 v%d, v%d offset:%d" % (t+5, t, XS[b]))
    g.lgkm0()
    e("v_add_f32 v%d, v%d, v%d" % (t+1, t+1, t+2))
    e("v_add_f32 v%d, v%d, v%d" % (t+3, t+3, t+4))
    e("v_add_f32 v%d, v%d, v%d" % (t+1, t+1, t+3))
    round_bf16([t+1], t+6)
    e("v_add_f32 v%d, s%d, v%d" % (t+1, sB2, t+1))
    round_bf16([t+1], t+6)
    e("v_add_f32 v%d, v%d, v%d" % (t+1, t+1, t+5))
    e("v_cvt_pk_bf16_f32 v%d, v%d, v%d" % (t+1, t+1, t+1))
    e("v_lshrrev_b32 v%d, 1, v%d" % (t, t))
    e("s_mov_b64 exec, 7")
    g.vm("global_store_short v%d, v%d, s[%d:%d] offset:%d" % (t, t+1, pOut, pOut+1, b*1152))
    e("s_mov_b64 exec, -1")
    g.label(skip)
    g.cond_end(st)

STAMPS = "--stamps" in sys.argv
nstamp = [0]
def stamp(name):
    if not STAMPS: return
    k = nstamp[0]; nstamp[0] += 1
    assert k < 14
    print("stamp", k, name)
    e("s_memrealtime s[%d:%d]" % (74+2*k, 75+2*k))
def stamp_flush():
    if not STAMPS: return
    g.lgkm0()
    e("s_lshl_b32 s%d, s2, 2" % sTmp)
    e("s_add_u32 s%d, s%d, s%d" % (sTmp, sTmp, sWave))
    e("s_lshl_b32 s%d, s%d, 8" % (sTmp, sTmp))
    e("s_add_u32 s%d, s%d, 0x%x" % (sTmp, sTmp, DBGOFF))
    e("s_mov_b64 exec, 1")
    for k in range(nstamp[0]):
        e("v_mov_b32 v%d, s%d" % (T+2*k, 74+2*k))
        e("v_mov_b32 v%d, s%d" % (T+2*k+1, 75+2*k))
        g.vm("buffer_store_dwordx2 v[%d:%d], v%d, s[%d:%d], s%d offen offset:%d" % (T+2*k, T+2*k+1, vL4, sWS, sWS+3, sTmp, 8*k))
    e("s_mov_b64 exec, -1")

def main():
    prologue()
    stamp("start")
    X0, X1 = T, T+46
    ix0 = load_x0(0, X0)
    ix1 = load_x0(1, X1)
    iwq = load_wq()
    clear_ws()
    NU = 32
    def unit_of(n):
        n %= NU
        return (n & 1, n >> 1)
    ids = {}
    D = 2
    for n in range(D):
        ids[n] = unit_load(*unit_of(n), n % NSLOT)
    g.wait_vm(ix1)
    g.lgkm0()
    e("s_lshl_b32 s%d, s%d, 16" % (sB2, sB2))
    unpack_x0(X0); unpack_x0(X1)
    store_xs(0, X0); store_xs(1, X1)
    pack_wq(iwq)
    q_stage(0, 0, X0, None)
    iq = q_stage(0, 1, X1, None)
    D2 = 6
    for n in range(D, D2):
        ids[n] = unit_load(*unit_of(n), n % NSLOT)
    g.wait_vm(iq)
    e("s_barrier")
    skip = g.newlabel("SG")
    st = g.cond_begin()
    e("s_cmp_lg_u32 s%d, 0" % sWave)
    e("s_cbranch_scc1 %s" % skip)
    e("s_lshl_b32 s%d, s%d, 2" % (sTmp, sHkv))
    e("v_mov_b32 v%d, s%d" % (vT, sTmp))
    e("v_mov_b32 v%d, 1" % (vT+1))
    e("s_mov_b64 exec, 1")
    g.vm("global_atomic_add v%d, v%d, s[%d:%d]" % (vT, vT+1, pDbg, pDbg+1))
    e("s_mov_b64 exec, -1")
    g.label(skip)
    g.cond_end(st)
    stamp("q1 published")
    counter_wait(False)
    q_gather(0, 0, check=False)
    q_gather(0, 1, check=False)
    acc_init(0); acc_init(1)
    stamp("q1 gathered")
    nxt = D2
    for n in range(NU):
        while nxt < NU and nxt < n + D2 + 1 and nxt - NSLOT < n:
            ids[nxt] = unit_load(*unit_of(nxt), nxt % NSLOT); nxt += 1
        unit_compute(unit_of(n)[0], n % NSLOT, ids[n])
    stamp("pass1 done")
    counter_wait(True)
    iwo = load_wo()
    combine_publish(0, 0); combine_publish(0, 1)
    g.wait_vm(iwo)
    stamp("rec published")
    wo_stage(0, 0); wo_stage(0, 1)
    stamp("wo done")
    imw = load_mlpw()
    for b in range(2):
        x_stage(0, b)
        R, H = mlp_stage(0, b, imw)
        mlp_publish(b, R)
    stamp("mlp done")
    for b in range(2):
        y_stage(b)
        q_stage(1, b, T, None)
    stamp("q2 published")
    q_gather(1, 0); q_gather(1, 1)
    stamp("q2 gathered")
    acc_init(0); acc_init(1)
    first = NU - NSLOT
    nxt = NU
    for n in range(first, first + NU):
        unit_compute(unit_of(n)[0], n % NSLOT, ids.get(n) if n >= NU else None)
        while nxt < first + NU and nxt - NSLOT <= n and nxt < max(n, NU) + 7:
            ids[nxt] = unit_load(*unit_of(nxt), nxt % NSLOT); nxt += 1
    stamp("pass2 done")
    iwo = load_wo()
    combine_publish(1, 0); combine_publish(1, 1)
    g.wait_vm(iwo)
    stamp("rec published")
    wo_stage(1, 0); wo_stage(1, 1)
    stamp("wo done")
    imw = load_mlpw()
    for b in range(2):
        x_stage(1, b)
        R, H = mlp_stage(1, b, imw)
        final_out(b, R)
    stamp("end")
    stamp_flush()
    g.label("L_end")
    e("s_endpgm")
    rescale_subs()

main()
out = HEADER + "; @launch grid=(256,1,1) block=(256,1,1) lds=%d\n" % LDS_BYTES
out += '''.amdgcn_target "amdgcn-amd-amdhsa--gfx950"
.text
.globl %s_kernel
.p2align 8
.type %s_kernel,@function
%s_kernel:
''' % (NAME, NAME, NAME)
out += "\n".join(g.L) + "\n"
out += '''.section .rodata,"a"
.p2align 6
.amdhsa_kernel %s_kernel
  .amdhsa_next_free_vgpr 512
  .amdhsa_next_free_sgpr 102
  .amdhsa_accum_offset 256
  .amdhsa_group_segment_fixed_size 0
  .amdhsa_kernarg_size 104
  .amdhsa_user_sgpr_count 2
  .amdhsa_user_sgpr_kernarg_segment_ptr 1
  .amdhsa_system_sgpr_workgroup_id_x 1
.end_amdhsa_kernel
''' % NAME
path = [a for a in sys.argv[1:] if not a.startswith("--")]
open(path[0] if path else 'cdna_kernels/%s.s' % NAME, 'w').write(out)
print("lines:", len(g.L))
```
